```python
import torch

def _softmax(x, axis=-1):
    return torch.softmax(x, dim=axis)
def _gelu(x):
    return torch.nn.functional.gelu(x, approximate="tanh")
def _silu(x):
    return torch.nn.functional.silu(x)
def _sigmoid(x):
    return torch.sigmoid(x)
def _layernorm(x, axis=-1, eps=1e-5):
    m = x.mean(dim=axis, keepdim=True)
    v = x.var(dim=axis, keepdim=True, unbiased=False)
    return (x - m) / torch.sqrt(v + eps)
def _scatter_add(tgt, idx, src, axis=0):
    return tgt.clone().index_add_(axis, idx, src)
def _segment_sum(src, seg, n):
    out = torch.zeros((n,) + src.shape[1:], dtype=src.dtype)
    return out.index_add_(0, seg, src)
def _pad(x, pw):
    flat = tuple(v for pair in reversed(pw) for v in pair)
    return torch.nn.functional.pad(x, flat)

kernel_name = 'concat_heads__gqa_block_cached__mha_block_cached__near_ridge'

def setup_inputs():

    _w = (lambda a: (lambda t: t.to(torch.bfloat16) if t.is_floating_point() else t)(torch.as_tensor(a)))
    def _A_setup():
        B, Sq, D = 8, 64, 576
        Hq, Hkv, Sk, Dh = 32, 16, 1024, 128
        assert Hq % Hkv == 0, (Hq, Hkv)
        return {
            "x": _w((lambda *s: torch.randn(*s, dtype=torch.bfloat16) * 0.8)(B, Sq, D)),
            "k_cache": _w((lambda *s: torch.randn(*s, dtype=torch.bfloat16) * 0.8)(B, Hkv, Sk, Dh)),
            "v_cache": _w((lambda *s: torch.randn(*s, dtype=torch.bfloat16) * 0.05)(B, Hkv, Sk, Dh)),
            "wq": _w((lambda *s: torch.randn(*s, dtype=torch.bfloat16) * 0.8)(D, Hq * Dh) * (D ** -0.5)),
            "wo": _w((lambda *s: torch.randn(*s, dtype=torch.bfloat16) * 0.05)(Hq * Dh, D) * ((Hq * Dh) ** -0.5)),
        }
    _A_in = _A_setup()

    def _B_setup():
        B, Sq, D = 8, 64, 576
        H, Sk, Dh = 32, 1024, 128
        return {
            "x": _w((lambda *s: torch.randn(*s, dtype=torch.bfloat16) * 0.8)(B, Sq, D)),
            "k_cache": _w((lambda *s: torch.randn(*s, dtype=torch.bfloat16) * 0.8)(B, H, Sk, Dh)),
            "v_cache": _w((lambda *s: torch.randn(*s, dtype=torch.bfloat16) * 0.05)(B, H, Sk, Dh)),
            "wq": _w((lambda *s: torch.randn(*s, dtype=torch.bfloat16) * 0.8)(D, H * Dh) * (D ** -0.5)),
            "wo": _w((lambda *s: torch.randn(*s, dtype=torch.bfloat16) * 0.05)(H * Dh, D) * ((H * Dh) ** -0.5)),
        }
    _B_in = _B_setup()

    return {
        "A_x": _A_in["x"],
        "A_k_cache": _A_in["k_cache"],
        "A_v_cache": _A_in["v_cache"],
        "A_wq": _A_in["wq"],
        "A_wo": _A_in["wo"],
        "B_x": _B_in["x"],
        "B_k_cache": _B_in["k_cache"],
        "B_v_cache": _B_in["v_cache"],
        "B_wq": _B_in["wq"],
        "B_wo": _B_in["wo"],
    }

def reference(A_x, A_k_cache, A_v_cache, A_wq, A_wo, B_x, B_k_cache, B_v_cache, B_wq, B_wo):
    def _A_ref(x, k_cache, v_cache, wq, wo):
        B, Sq, D = x.shape
        Hq, Dh = 32, 128
        Hkv = k_cache.shape[1]
        rep = Hq // Hkv
        q = (lambda x, *d: x.permute(*d))((x @ wq).reshape(B, Sq, Hq, Dh), 0, 2, 1, 3)
        k = (lambda x, n, axis: torch.repeat_interleave(x, n, dim=axis))(k_cache, rep, axis=1)
        v = (lambda x, n, axis: torch.repeat_interleave(x, n, dim=axis))(v_cache, rep, axis=1)
        scores = torch.einsum("bhqd,bhkd->bhqk", q, k) * (Dh ** -0.5)
        p = _softmax(scores, axis=-1)
        o = torch.einsum("bhqk,bhkd->bhqd", p, v)
        return (lambda x, *d: x.permute(*d))(o, 0, 2, 1, 3).reshape(B, Sq, Hq * Dh) @ wo

    def _B_ref(x, k_cache, v_cache, wq, wo):
        B, Sq, D = x.shape
        H, Dh = 32, 128
        q = (lambda x, *d: x.permute(*d))((x @ wq).reshape(B, Sq, H, Dh), 0, 2, 1, 3)
        scores = torch.einsum("bhqd,bhkd->bhqk", q, k_cache) * (Dh ** -0.5)
        p = _softmax(scores, axis=-1)
        o = torch.einsum("bhqk,bhkd->bhqd", p, v_cache)
        return (lambda x, *d: x.permute(*d))(o, 0, 2, 1, 3).reshape(B, Sq, H * Dh) @ wo

    a = _A_ref(A_x, A_k_cache, A_v_cache, A_wq, A_wo)
    b = _B_ref(B_x, B_k_cache, B_v_cache, B_wq, B_wo)
    return torch.concatenate([a, b], axis=-1)
```

```python
class Asm:
    def __init__(self):
        self.L = []
    def __call__(self, s):
        for line in s.split("\n"):
            line = line.strip()
            if line:
                self.L.append(("" if line.endswith(":") else "  ") + line)
    def label(self, n):
        self.L.append(n + ":")
    def c(self, s):
        self.L.append("  ; " + s)
    def text(self):
        return "\n".join(self.L) + "\n"

def v(n, cnt=1):
    return f"v{n}" if cnt == 1 else f"v[{n}:{n+cnt-1}]"
def a(n, cnt=1):
    return f"a{n}" if cnt == 1 else f"a[{n}:{n+cnt-1}]"
def s(n, cnt=1):
    return f"s{n}" if cnt == 1 else f"s[{n}:{n+cnt-1}]"

def kd(name, vgpr, sgpr, accum):
    return f""".amdhsa_kernel {name}
  .amdhsa_next_free_vgpr {vgpr}
  .amdhsa_next_free_sgpr {sgpr}
  .amdhsa_accum_offset {accum}
  .amdhsa_group_segment_fixed_size 0
  .amdhsa_kernarg_size 104
  .amdhsa_user_sgpr_count 2
  .amdhsa_user_sgpr_kernarg_segment_ptr 1
  .amdhsa_system_sgpr_workgroup_id_x 1
.end_amdhsa_kernel
"""
```

```python
from asmlib import *
import math

LOG2E = 1.4426950408889634
QSCALE = LOG2E / math.sqrt(128.0)
def f2u(x):
    import struct
    return struct.unpack("<I", struct.pack("<f", x))[0]

RING = 32768
KA, VA, KB, VB = 0, 8192, 16384, 24576
EXTRA = 131072
vTID, vLANE = 0, 1
vDMA = 2
vKa = 6
vVa = 14
vM = 22
vMT = 24
vL = 26
vT = 30
vQ = 40
vS = 104
vKF = 136
vVF = 168
vP = 200
NV = 216
vQacc = 104
vWF = 168
vWdma = 200
vXdma = 204
vWa = 205
vXa = 207
sK, sV, sX, sW, sO = 24, 28, 32, 36, 40
sWv, sHH, sKH, sRing, sKoff, sCnt = 44, 45, 46, 47, 48, 49
sT0, sT1, sT2, sT3 = 50, 51, 52, 53
sRot, sB, sH0, sType = 54, 55, 56, 57
sTile = 58
sM0, sM1 = 64, 66

class VQ:
    def __init__(self, A): self.q = []; self.A = A
    def issue(self, tag): self.q.append(tag)
    def wait(self, *tags):
        last = max(i for i, t in enumerate(self.q) if t in tags)
        n = len(self.q) - 1 - last
        assert n <= 63, n
        self.A(f"s_waitcnt vmcnt({n})")
        self.q = self.q[last + 1:]
    def wait_all(self):
        self.A("s_waitcnt vmcnt(0)"); self.q = []

def gen_k1(name, opt):
    A = Asm()
    fine = opt.get("fine", True)
    kvflag = opt.get("kvflag", "nt")
    wflag = opt.get("wflag", "")
    k0_step = opt.get("k0_step", 4); v0_step = opt.get("v0_step", 5)
    THR = opt.get("thr", 8.0)
    dbg = opt.get("dbg", None)
    stamp = opt.get("stamp", False)
    A(f".globl {name}\n.p2align 8\n.type {name},@function\n{name}:")
    A(f"s_cmp_ge_u32 s2, 256\ns_cbranch_scc1 L_k1_done")
    if stamp: A("s_memrealtime s[70:71]")
    A("s_load_dwordx8 s[4:11], s[0:1], 0")
    A("s_load_dwordx8 s[12:19], s[0:1], 40")
    A("s_load_dwordx2 s[20:21], s[0:1], 96")
    A(f"v_lshrrev_b32 {v(vT)}, 6, v0")
    A(f"v_and_b32 {v(vLANE)}, 63, v0")
    A(f"v_readfirstlane_b32 {s(sWv)}, {v(vT)}")
    A(f"s_and_b32 {s(sT0)}, s2, 7")
    A(f"s_lshr_b32 {s(sT1)}, s2, 3")
    A(f"s_and_b32 {s(sType)}, {s(sT1)}, 1")
    A(f"s_lshr_b32 {s(sT1)}, {s(sT1)}, 1")
    A(f"s_and_b32 {s(sT2)}, {s(sT1)}, 1")
    A(f"s_lshr_b32 {s(sB)}, {s(sT1)}, 1")
    A(f"s_lshl_b32 {s(sH0)}, {s(sT0)}, 2")
    A(f"s_lshl_b32 {s(sT3)}, {s(sT2)}, 1")
    A(f"s_add_u32 {s(sH0)}, {s(sH0)}, {s(sT3)}")
    A(f"s_lshl_b32 {s(sT3)}, {s(sT2)}, 2")
    A(f"s_add_u32 {s(sRot)}, {s(sB)}, {s(sT3)}")
    A(f"s_and_b32 {s(sRot)}, {s(sRot)}, 7")
    A(f"s_and_b32 {s(sHH)}, {s(sWv)}, 1")
    A(f"s_lshr_b32 {s(sKH)}, {s(sWv)}, 1")
    A(f"s_lshl_b32 {s(sRing)}, {s(sWv)}, 15")
    A("s_waitcnt lgkmcnt(0)")
    A(f"s_cmp_eq_u32 {s(sType)}, 0")
    for i in range(8): A(f"s_cselect_b32 {s(4+i)}, {s(4+i)}, {s(12+i)}")
    A(f"s_add_u32 {s(sT0)}, {s(sH0)}, {s(sHH)}")
    A(f"s_lshl_b32 {s(sT1)}, {s(sB)}, 5")
    A(f"s_add_u32 {s(sT1)}, {s(sT1)}, {s(sT0)}")
    A(f"s_lshr_b32 {s(sT2)}, {s(sH0)}, 1")
    A(f"s_lshl_b32 {s(sT3)}, {s(sB)}, 4")
    A(f"s_add_u32 {s(sT2)}, {s(sT2)}, {s(sT3)}")
    A(f"s_cmp_eq_u32 {s(sType)}, 0")
    A(f"s_cselect_b32 {s(sT2)}, {s(sT2)}, {s(sT1)}")
    A(f"s_lshl_b32 {s(sT2)}, {s(sT2)}, 18")
    for srd, p in ((sK, 6), (sV, 8)):
        A(f"s_add_u32 {s(srd)}, {s(p)}, {s(sT2)}")
        A(f"s_addc_u32 {s(srd+1)}, {s(p+1)}, 0")
        A(f"s_and_b32 {s(srd+1)}, {s(srd+1)}, 0xffff")
        A(f"s_mov_b32 {s(srd+2)}, 0x40000")
        A(f"s_mov_b32 {s(srd+3)}, 0x20000")
    A(f"s_lshl_b32 {s(sT2)}, {s(sType)}, 8")
    A(f"s_add_u32 {s(sT1)}, {s(sT1)}, {s(sT2)}")
    A(f"s_lshl_b32 {s(sT1)}, {s(sT1)}, 14")
    A(f"s_add_u32 {s(sO)}, s20, {s(sT1)}")
    A(f"s_addc_u32 {s(sO+1)}, s21, 0")
    A(f"s_and_b32 {s(sO+1)}, {s(sO+1)}, 0xffff")
    A(f"s_mov_b32 {s(sO+2)}, 16384")
    A(f"s_mov_b32 {s(sO+3)}, 0x20000")
    A(f"s_mul_i32 {s(sT1)}, {s(sB)}, 73728")
    A(f"s_add_u32 {s(sX)}, s4, {s(sT1)}")
    A(f"s_addc_u32 {s(sX+1)}, s5, 0")
    A(f"s_and_b32 {s(sX+1)}, {s(sX+1)}, 0xffff")
    A(f"s_mov_b32 {s(sX+2)}, 73728")
    A(f"s_mov_b32 {s(sX+3)}, 0x20000")
    A(f"s_lshl_b32 {s(sT1)}, {s(sT0)}, 8")
    A(f"s_lshl_b32 {s(sT2)}, {s(sKH)}, 7")
    A(f"s_add_u32 {s(sT1)}, {s(sT1)}, {s(sT2)}")
    A(f"s_add_u32 {s(sW)}, s10, {s(sT1)}")
    A(f"s_addc_u32 {s(sW+1)}, s11, 0")
    A(f"s_and_b32 {s(sW+1)}, {s(sW+1)}, 0xffff")
    A(f"s_sub_u32 {s(sW+2)}, 4718592, {s(sT1)}")
    A(f"s_mov_b32 {s(sW+3)}, 0x20000")
    L = v(vLANE); T0, T1, T2, T3 = (v(vT + i) for i in range(4))
    A(f"v_lshrrev_b32 {T0}, 4, {L}")
    A(f"s_lshl_b32 {s(sT1)}, {s(sHH)}, 2")
    A(f"v_or_b32 {T0}, {s(sT1)}, {T0}")
    A(f"v_and_b32 {T1}, 7, {L}")
    A(f"v_xor_b32 {T0}, {T0}, {T1}")
    A(f"v_lshlrev_b32 {T0}, 4, {T0}")
    A(f"v_lshrrev_b32 {T1}, 3, {L}")
    A(f"v_mul_u32_u24 {T2}, 1152, {T1}")
    A(f"v_add_u32 {v(vXdma)}, {T0}, {T2}")
    A(f"v_lshrrev_b32 {T0}, 4, {L}")
    A(f"v_and_b32 {T0}, 1, {T0}")
    A(f"v_lshlrev_b32 {T0}, 2, {T0}")
    A(f"v_and_b32 {T2}, 7, {L}")
    A(f"v_xor_b32 {T0}, {T0}, {T2}")
    A(f"v_lshlrev_b32 {T0}, 4, {T0}")
    A(f"v_lshlrev_b32 {T1}, 13, {T1}")
    A(f"v_add_u32 {v(vWdma)}, {T0}, {T1}")
    for n in range(1, 4): A(f"v_add_u32 {v(vWdma+n)}, {n*64512}, {v(vWdma)}")
    Q = VQ(A)
    def tile_of(t, dst):
        A(f"s_add_u32 {s(dst)}, {s(sRot)}, {t}")
        A(f"s_cmp_ge_u32 {s(dst)}, 9")
        A(f"s_cselect_b32 {s(sT3)}, 9, 0")
        A(f"s_sub_u32 {s(dst)}, {s(dst)}, {s(sT3)}")
    def issue_x(t):
        tile_of(t, sT0)
        A(f"s_lshl_b32 {s(sT0)}, {s(sT0)}, 7")
        A(f"s_mul_i32 {s(sT1)}, {s(sWv)}, 9216")
        A(f"s_add_u32 {s(sT0)}, {s(sT0)}, {s(sT1)}")
        A(f"s_lshl_b32 {s(sT1)}, {s(sWv)}, 10")
        A(f"s_add_u32 m0, {s(sT1)}, {EXTRA + (t % 3) * 8192}")
        A(f"s_add_u32 {s(sT2)}, {s(sT0)}, {4*9216}")
        A(f"buffer_load_dwordx4 {v(vXdma)}, {s(sX,4)}, {s(sT0)} offen {wflag} lds"); Q.issue(f"x{t}")
        A(f"s_add_u32 m0, {s(sT1)}, {EXTRA + (t % 3) * 8192 + 4096}")
        A("s_nop 0")
        A(f"buffer_load_dwordx4 {v(vXdma)}, {s(sX,4)}, {s(sT2)} offen {wflag} lds"); Q.issue(f"x{t}")
    def issue_w(t):
        tile_of(t, sT0)
        A(f"s_lshl_b32 {s(sT0)}, {s(sT0)}, 19")
        for half in range(2):
            A(f"s_add_u32 m0, {s(sRing)}, {KB + (t & 1) * 8192 + half * 4096}")
            if half: A(f"s_add_u32 {s(sT0)}, {s(sT0)}, {32*8192}")
            else: A("s_nop 0")
            for n in range(4):
                A(f"buffer_load_dwordx4 {v(vWdma+n)}, {s(sW,4)}, {s(sT0)} offen offset:{n*1024} {wflag} lds"); Q.issue(f"w{t}")
    def issue_kv(srd, slot, tag, q=None):
        hs = 8192 if fine else 4096
        for half in range(2):
            A(f"s_add_u32 m0, {s(sRing)}, {slot + half*4096}")
            A(f"s_add_u32 {s(sT0)}, {s(sKoff)}, {half*hs}")
            for n in range(4):
                A(f"buffer_load_dwordx4 {v(vDMA+n)}, {s(srd,4)}, {s(sT0)} offen offset:{n*1024} {kvflag} lds")
                if q is not None: q.issue(tag)
    issue_x(0); issue_w(0); issue_x(1); issue_w(1)
    A(f"v_lshrrev_b32 {T0}, 4, {L}")
    A(f"v_lshlrev_b32 {T1}, 2, {T0}")
    A(f"v_and_b32 {T2}, 15, {L}")
    A(f"v_xor_b32 {T1}, {T1}, {T2}")
    A(f"v_lshlrev_b32 {T0}, 8, {T0}")
    for n in range(4):
        A(f"v_xor_b32 {T2}, {n}, {T1}")
        A(f"v_lshlrev_b32 {T2}, 4, {T2}")
        A(f"v_add_u32 {v(vDMA+n)}, {T0}, {T2}")
        if fine and n: A(f"v_add_u32 {v(vDMA+n)}, {n*1024}, {v(vDMA+n)}")
    A(f"s_lshl_b32 {s(sKoff)}, {s(sKH)}, {10 if fine else 13}")
    A(f"v_and_b32 {T0}, 31, {L}")
    A(f"v_and_b32 {T1}, 3, {T0}")
    A(f"v_lshlrev_b32 {T1}, 2, {T1}")
    A(f"v_bfe_u32 {T2}, {T0}, 2, 2")
    A(f"v_or_b32 {T1}, {T1}, {T2}")
    A(f"v_lshrrev_b32 {T2}, 5, {L}")
    A(f"v_xor_b32 {T1}, {T1}, {T2}")
    A(f"v_lshlrev_b32 {T1}, 4, {T1}")
    A(f"v_lshlrev_b32 {T0}, 8, {T0}")
    A(f"v_add_u32 {T0}, {T0}, {T1}")
    A(f"v_add_u32 {v(vKa)}, {s(sRing)}, {T0}")
    for kk in range(1, 8): A(f"v_xor_b32 {v(vKa+kk)}, {kk<<5}, {v(vKa)}")
    A(f"v_bfe_u32 {T0}, {L}, 4, 1")
    A(f"v_lshlrev_b32 {T0}, 1, {T0}")
    A(f"v_bfe_u32 {T1}, {L}, 1, 1")
    A(f"v_or_b32 {T0}, {T0}, {T1}")
    A(f"v_bfe_u32 {T1}, {L}, 2, 2")
    A(f"v_lshlrev_b32 {T2}, 2, {T1}")
    A(f"v_xor_b32 {T0}, {T0}, {T2}")
    A(f"v_lshrrev_b32 {T2}, 5, {L}")
    A(f"v_xor_b32 {T0}, {T0}, {T2}")
    A(f"v_lshlrev_b32 {T0}, 4, {T0}")
    A(f"v_lshlrev_b32 {T2}, 2, {T2}")
    A(f"v_add_u32 {T1}, {T1}, {T2}")
    A(f"v_lshlrev_b32 {T1}, 8, {T1}")
    A(f"v_add_u32 {T0}, {T0}, {T1}")
    A(f"v_and_b32 {T1}, 1, {L}")
    A(f"v_lshlrev_b32 {T1}, 3, {T1}")
    A(f"v_add_u32 {T0}, {T0}, {T1}")
    A(f"v_add_u32 {T0}, {s(sRing)}, {T0}")
    for dt in range(4):
        for u in range(2):
            A(f"v_xor_b32 {v(vVa+dt*2+u)}, {(dt<<6)|(u<<5)}, {T0}")
            if u: A(f"v_add_u32 {v(vVa+dt*2+u)}, 2048, {v(vVa+dt*2+u)}")
    A(f"v_bfe_u32 {T0}, {L}, 4, 1")
    A(f"v_lshlrev_b32 {T0}, 1, {T0}")
    A(f"v_and_b32 {T1}, 1, {L}")
    A(f"v_or_b32 {T0}, {T0}, {T1}")
    A(f"v_bfe_u32 {T1}, {L}, 3, 1")
    A(f"v_lshlrev_b32 {T1}, 2, {T1}")
    A(f"v_xor_b32 {T0}, {T0}, {T1}")
    A(f"v_lshlrev_b32 {T0}, 4, {T0}")
    A(f"v_bfe_u32 {T1}, {L}, 2, 2")
    A(f"v_lshrrev_b32 {T2}, 5, {L}")
    A(f"v_lshlrev_b32 {T2}, 3, {T2}")
    A(f"v_add_u32 {T1}, {T1}, {T2}")
    A(f"v_lshlrev_b32 {T1}, 7, {T1}")
    A(f"v_add_u32 {T0}, {T0}, {T1}")
    A(f"v_bfe_u32 {T1}, {L}, 1, 1")
    A(f"v_lshlrev_b32 {T1}, 3, {T1}")
    A(f"v_add_u32 {T0}, {T0}, {T1}")
    A(f"v_add_u32 {T0}, {s(sRing)}, {T0}")
    A(f"v_add_u32 {v(vWa)}, {KB}, {T0}")
    A(f"v_xor_b32 {v(vWa+1)}, 64, {v(vWa)}")
    A(f"v_and_b32 {T0}, 31, {L}")
    A(f"v_bfe_u32 {T1}, {T0}, 1, 3")
    A(f"v_lshrrev_b32 {T2}, 5, {L}")
    A(f"v_xor_b32 {T1}, {T1}, {T2}")
    A(f"v_lshlrev_b32 {T1}, 4, {T1}")
    A(f"v_lshlrev_b32 {T0}, 7, {T0}")
    A(f"v_add_u32 {T0}, {T0}, {T1}")
    A(f"v_add_u32 {v(vXa)}, {EXTRA}, {T0}")
    for kk in range(1, 4): A(f"v_xor_b32 {v(vXa+kk)}, {kk<<5}, {v(vXa)}")
    for i in range(128): A(f"v_accvgpr_write_b32 {a(i)}, 0")
    for qh in range(2):
        A(f"v_mov_b32 {v(vM+qh)}, 0xf149f2ca")
        A(f"v_mov_b32 {v(vMT+qh)}, 0xf149f2ca")
        A(f"v_mov_b32 {v(vL+2*qh)}, 0"); A(f"v_mov_b32 {v(vL+2*qh+1)}, 0")
    for t in range(9):
        Q.wait(f"x{t}", f"w{t}")
        A("s_barrier")
        if t + 2 <= 8: issue_x(t + 2)
        def reads(kk):
            buf = vWF + (kk & 1) * 16
            for dt in range(2):
                for u in range(2):
                    A(f"ds_read_b64_tr_b16 {v(buf+dt*4+u*2,2)}, {v(vWa+dt)} offset:{(t&1)*8192 + kk*2048 + u*512}")
            for qh in range(2):
                A(f"ds_read_b128 {v(buf+8+qh*4,4)}, {v(vXa+kk)} offset:{(t%3)*8192 + qh*4096}")
        reads(0)
        for kk in range(4):
            if kk < 3:
                reads(kk + 1); A("s_waitcnt lgkmcnt(6)")
            else:
                A("s_waitcnt lgkmcnt(0)")
            buf = vWF + (kk & 1) * 16
            for dt in range(2):
                for qh in range(2):
                    acc = v(vQacc + (dt*2+qh)*16, 16)
                    c = "0" if (t == 0 and kk == 0) else acc
                    A(f"v_mfma_f32_32x32x16_bf16 {acc}, {v(buf+dt*4,4)}, {v(buf+8+qh*4,4)}, {c}")
        if t + 2 <= 8: issue_w(t + 2)
        if t == k0_step: issue_kv(sK, KA, "K0", Q)
        if t == v0_step: issue_kv(sV, VA, "V0", Q)
    assert k0_step <= v0_step <= 8
    A(f"s_add_u32 {s(sKoff)}, {s(sKoff)}, 16384")
    issue_kv(sK, KB, "K1", Q); issue_kv(sV, VB, "V1", Q)
    A(f"s_add_u32 {s(sKoff)}, {s(sKoff)}, 16384")
    A("s_barrier")
    A(f"s_mov_b32 {s(sT0)}, {f2u(QSCALE):#x}")
    A(f"s_lshl_b32 {s(sT1)}, {s(sWv)}, 13")
    A(f"v_lshlrev_b32 {T0}, 4, {L}")
    A(f"v_add_u32 {T1}, {s(sT1)}, {T0}")
    A(f"v_add_u32 {T1}, {EXTRA}, {T1}")
    A(f"s_lshl_b32 {s(sT1)}, {s(sHH)}, 13")
    A(f"v_add_u32 {T2}, {s(sT1)}, {T0}")
    A(f"v_add_u32 {T2}, {EXTRA}, {T2}")
    for dt in range(2):
        for qh in range(2):
            acc = vQacc + (dt*2+qh)*16
            for r in range(16): A(f"v_mul_f32 {v(acc+r)}, {s(sT0)}, {v(acc+r)}")
            for m in range(2):
                dst = vVF + ((dt*2+m)*2+qh)*4
                for j in range(4): A(f"v_cvt_pk_bf16_f32 {v(dst+j)}, {v(acc+8*m+2*j)}, {v(acc+8*m+2*j+1)}")
    for f in range(8): A(f"ds_write_b128 {T1}, {v(vVF+f*4,4)} offset:{f*1024}")
    A("s_waitcnt lgkmcnt(0)")
    A("s_barrier")
    for half in range(2):
        for kl in range(4):
            for qh in range(2):
                kk = half*4 + kl
                A(f"ds_read_b128 {v(vQ+qh*32+kk*4,4)}, {T2} offset:{half*16384 + (kl*2+qh)*1024}")
        A("s_waitcnt lgkmcnt(0)")
    if dbg == "q":
        A(f"s_lshl_b32 {s(sT0)}, s2, 2"); A(f"s_add_u32 {s(sT0)}, {s(sT0)}, {s(sWv)}"); A(f"s_lshl_b32 {s(sT0)}, {s(sT0)}, 14")
        A(f"s_add_u32 {s(sT0)}, {s(sT0)}, 0x1000000")
        A(f"v_lshlrev_b32 {T0}, 4, {L}"); A(f"v_add_u32 {T0}, {s(sT0)}, {T0}")
        for f in range(16):
            A(f"global_store_dwordx4 {T0}, {v(vQ+f*4,4)}, s[20:21]"); A(f"v_add_u32 {T0}, 1024, {T0}")
        A("s_waitcnt vmcnt(0)")
    if stamp: A("s_memrealtime s[72:73]")
    A(f"s_mov_b32 {s(sTile)}, 0")
    A("L_k1_loop:")
    for par in range(2):
        ks, vs = (KA, VA) if par == 0 else (KB, VB)
        A("s_waitcnt vmcnt(24)")
        for kk in range(8): A(f"ds_read_b128 {v(vKF+kk*4,4)}, {v(vKa+kk)} offset:{ks}")
        for kk in range(8):
            A(f"s_waitcnt lgkmcnt({7-kk})")
            for qh in range(2):
                acc = v(vS+16*qh, 16)
                A(f"v_mfma_f32_32x32x16_bf16 {acc}, {v(vKF+kk*4,4)}, {v(vQ+qh*32+kk*4,4)}, {'0' if kk == 0 else acc}")
        issue_kv(sK, ks, None)
        A("s_nop 1")
        for qh in range(2):
            b = vS + 16*qh; t = v(vT+qh)
            A(f"v_max3_f32 {t}, {v(b)}, {v(b+1)}, {v(b+2)}")
            for i in range(3, 15, 2): A(f"v_max3_f32 {t}, {t}, {v(b+i)}, {v(b+i+1)}")
            A(f"v_max_f32 {t}, {t}, {v(b+15)}")
        A(f"v_cmp_gt_f32 vcc, {v(vT)}, {v(vMT)}")
        A(f"v_cmp_gt_f32 {s(sM0,2)}, {v(vT+1)}, {v(vMT+1)}")
        A(f"s_or_b64 {s(sM0,2)}, {s(sM0,2)}, vcc")
        A(f"s_cbranch_scc1 L_k1_rare{par}")
        A(f"L_k1_back{par}:")
        for qh in range(2):
            b = vS + 16*qh
            for i in range(16): A(f"v_sub_f32 {v(b+i)}, {v(b+i)}, {v(vM+qh)}")
            for i in range(16): A(f"v_exp_f32 {v(b+i)}, {v(b+i)}")
        for qh in range(2):
            b = vS + 16*qh
            for i in range(16): A(f"v_add_f32 {v(vL+2*qh+(i&1))}, {v(vL+2*qh+(i&1))}, {v(b+i)}")
            for m in range(2):
                for j in range(4): A(f"v_cvt_pk_bf16_f32 {v(vP+qh*8+m*4+j)}, {v(b+8*m+2*j)}, {v(b+8*m+2*j+1)}")
        A("s_waitcnt vmcnt(24)")
        for dt in range(4):
            for m in range(2):
                for u in range(2):
                    A(f"ds_read_b64_tr_b16 {v(vVF+(dt*2+m)*4+u*2,2)}, {v(vVa+dt*2+u)} offset:{vs + m*4096}")
        for dt in range(4):
            for m in range(2):
                A(f"s_waitcnt lgkmcnt({14-(dt*2+m)*2})")
                for qh in range(2):
                    acc = a((dt*2+qh)*16, 16)
                    A(f"v_mfma_f32_32x32x16_bf16 {acc}, {v(vVF+(dt*2+m)*4,4)}, {v(vP+qh*8+m*4,4)}, {acc}")
        issue_kv(sV, vs, None)
        A(f"s_add_u32 {s(sKoff)}, {s(sKoff)}, 16384")
        A(f"s_add_u32 {s(sTile)}, {s(sTile)}, 1")
    A(f"s_cmp_lt_u32 {s(sTile)}, 16")
    A("s_cbranch_scc1 L_k1_loop")
    A("s_branch L_k1_epi")
    for par in range(2):
        A(f"L_k1_rare{par}:")
        for qh in range(2):
            t = v(vT+qh); c = v(vT+2+qh)
            A(f"v_mov_b32 {c}, {t}")
        A("s_nop 1")
        for qh in range(2): A(f"v_permlane32_swap_b32 {v(vT+qh)}, {v(vT+2+qh)}")
        A("s_nop 1")
        for qh in range(2):
            A(f"v_max3_f32 {v(vT+qh)}, {v(vT+qh)}, {v(vT+2+qh)}, {v(vM+qh)}")
        for qh in range(2):
            A(f"v_sub_f32 {v(vT+2+qh)}, {v(vM+qh)}, {v(vT+qh)}")
        for qh in range(2): A(f"v_exp_f32 {v(vT+2+qh)}, {v(vT+2+qh)}")
        for qh in range(2):
            A(f"v_mov_b32 {v(vM+qh)}, {v(vT+qh)}")
            A(f"v_add_f32 {v(vMT+qh)}, {THR}, {v(vT+qh)}" if THR in (0.5,1.0,2.0,4.0) else f"v_add_f32 {v(vMT+qh)}, {f2u(THR):#x}, {v(vT+qh)}")
        for qh in range(2):
            for j in range(2): A(f"v_mul_f32 {v(vL+2*qh+j)}, {v(vL+2*qh+j)}, {v(vT+2+qh)}")
        A(f"s_cmp_eq_u32 {s(sTile)}, 0")
        A(f"s_cbranch_scc1 L_k1_back{par}")
        for dt in range(4):
            for qh in range(2):
                base = (dt*2+qh)*16
                for r0 in range(0, 16, 4):
                    for r in range(4): A(f"v_accvgpr_read_b32 {v(vT+4+r)}, {a(base+r0+r)}")
                    for r in range(4): A(f"v_mul_f32 {v(vT+4+r)}, {v(vT+4+r)}, {v(vT+2+qh)}")
                    for r in range(4): A(f"v_accvgpr_write_b32 {a(base+r0+r)}, {v(vT+4+r)}")
        A("s_nop 1")
        A(f"s_branch L_k1_back{par}")
    A("L_k1_epi:")
    if stamp: A("s_memrealtime s[74:75]")
    A("s_waitcnt vmcnt(0)")
    MM = vT
    for qh in range(2):
        A(f"v_add_f32 {v(vL+2*qh)}, {v(vL+2*qh)}, {v(vL+2*qh+1)}")
        A(f"v_mov_b32 {v(vL+2*qh+1)}, {v(vL+2*qh)}")
    A("s_nop 1")
    for qh in range(2): A(f"v_permlane32_swap_b32 {v(vL+2*qh)}, {v(vL+2*qh+1)}")
    A("s_nop 1")
    for qh in range(2):
        A(f"v_add_f32 {v(MM+2+qh)}, {v(vL+2*qh)}, {v(vL+2*qh+1)}")
        A(f"v_mov_b32 {v(MM+qh)}, {v(vM+qh)}")
    A(f"v_lshlrev_b32 {v(vKa)}, 4, {L}")
    A(f"s_xor_b32 {s(sT0)}, {s(sRing)}, {2*RING}")
    A(f"v_add_u32 {v(vKa+1)}, {s(sT0)}, {v(vKa)}")
    A(f"v_add_u32 {v(vKa)}, {s(sRing)}, {v(vKa)}")
    A(f"ds_write_b128 {v(vKa)}, {v(MM,4)} offset:16384")
    A(f"v_bfe_u32 {v(vKa+2)}, {L}, 4, 1"); A(f"v_lshlrev_b32 {v(vKa+2)}, 10, {v(vKa+2)}")
    A(f"v_lshrrev_b32 {v(vKa+3)}, 5, {L}"); A(f"v_lshlrev_b32 {v(vKa+3)}, 8, {v(vKa+3)}")
    A(f"v_add_u32 {v(vKa+2)}, {v(vKa+2)}, {v(vKa+3)}")
    A(f"v_and_b32 {v(vKa+3)}, 15, {L}"); A(f"v_lshlrev_b32 {v(vKa+3)}, 4, {v(vKa+3)}")
    A(f"v_add_u32 {v(vKa+2)}, {v(vKa+2)}, {v(vKa+3)}")
    A(f"s_cmp_eq_u32 {s(sKH)}, 0")
    A("s_cbranch_scc0 L_k1_epi1")
    for kh in range(2):
        if kh == 1: A("L_k1_epi1:")
        keep = [2*kh, 2*kh+1]; send = [2*(1-kh), 2*(1-kh)+1]
        f = 0
        for dt in send:
            for qh in range(2):
                for rq in range(4):
                    A(f"ds_write_b128 {v(vKa)}, {a((dt*2+qh)*16+4*rq,4)} offset:{f*1024}"); f += 1
        A("s_waitcnt lgkmcnt(0)")
        A("s_barrier")
        A(f"ds_read_b128 {v(MM+4,4)}, {v(vKa+1)} offset:16384")
        for f in range(16): A(f"ds_read_b128 {v(vS+f*4,4)}, {v(vKa+1)} offset:{f*1024}")
        A("s_waitcnt lgkmcnt(15)")
        FS, FO = vP, vP + 2
        for qh in range(2):
            A(f"v_max_f32 {v(vP+4+qh)}, {v(MM+qh)}, {v(MM+4+qh)}")
        for qh in range(2):
            A(f"v_sub_f32 {v(FS+qh)}, {v(MM+qh)}, {v(vP+4+qh)}")
            A(f"v_sub_f32 {v(FO+qh)}, {v(MM+4+qh)}, {v(vP+4+qh)}")
        for qh in range(2):
            A(f"v_exp_f32 {v(FS+qh)}, {v(FS+qh)}")
            A(f"v_exp_f32 {v(FO+qh)}, {v(FO+qh)}")
        A("s_nop 0")
        for qh in range(2):
            A(f"v_mul_f32 {v(vP+4+qh)}, {v(MM+2+qh)}, {v(FS+qh)}")
            A(f"v_fma_f32 {v(vP+4+qh)}, {v(MM+6+qh)}, {v(FO+qh)}, {v(vP+4+qh)}")
        for qh in range(2): A(f"v_rcp_f32 {v(vP+4+qh)}, {v(vP+4+qh)}")
        A("s_nop 0")
        for qh in range(2):
            A(f"v_mul_f32 {v(FS+qh)}, {v(FS+qh)}, {v(vP+4+qh)}")
            A(f"v_mul_f32 {v(FO+qh)}, {v(FO+qh)}, {v(vP+4+qh)}")
        A("s_waitcnt lgkmcnt(0)")
        for dl, dt in enumerate(keep):
            A(f"s_mov_b32 {s(sT0)}, {dt*4096}")
            for qh in range(2):
                oth = vS + (dl*2+qh)*16
                own = (dt*2+qh)*16
                tmp = vVF + qh*16
                for r in range(16): A(f"v_accvgpr_read_b32 {v(tmp+r)}, {a(own+r)}")
                for r in range(16): A(f"v_mul_f32 {v(oth+r)}, {v(oth+r)}, {v(FO+qh)}")
                for r in range(16): A(f"v_fma_f32 {v(oth+r)}, {v(tmp+r)}, {v(FS+qh)}, {v(oth+r)}")
                for m in range(2):
                    dst = vQ + ((dl*2+qh)*2+m)*4
                    for j in range(4): A(f"v_cvt_pk_bf16_f32 {v(dst+j)}, {v(oth+8*m+2*j)}, {v(oth+8*m+2*j+1)}")
                    A(f"buffer_store_dwordx4 {v(dst,4)}, {v(vKa+2)}, {s(sO,4)}, {s(sT0)} offen offset:{qh*2048+m*512} {opt.get('oflag','')}")
        A("s_branch L_k1_fin")
    A("L_k1_fin:")
    if stamp:
        A("s_waitcnt vmcnt(0)")
        A("s_memrealtime s[76:77]")
        A("s_waitcnt lgkmcnt(0)")
        A(f"s_lshl_b32 {s(sT0)}, s2, 2"); A(f"s_add_u32 {s(sT0)}, {s(sT0)}, {s(sWv)}"); A(f"s_lshl_b32 {s(sT0)}, {s(sT0)}, 4")
        A(f"s_add_u32 {s(sT0)}, {s(sT0)}, 0x2000000")
        A(f"v_mov_b32 v8, s70\nv_mov_b32 v9, s72\nv_mov_b32 v10, s74\nv_mov_b32 v11, s76\nv_mov_b32 v5, {s(sT0)}")
        A(f"v_cmp_eq_u32 vcc, 0, {L}\ns_and_saveexec_b64 s[78:79], vcc")
        A("global_store_dwordx4 v5, v[8:11], s[20:21]")
    A("L_k1_done:")
    A("s_endpgm")
    return A.text(), kd(name, 512, 102, 256)
```

```python
from asmlib import *
from k1 import VQ

def gen_k2(name, opt):
    A = Asm()
    D = 8
    wflag = opt.get("woflag", ""); oflag = opt.get("oldflag", "")
    stamp = opt.get("stamp", False)
    vL, vT = 1, 2
    vWd = 10
    vWa = 14
    vOl = 18
    vAF = 20
    vAcc = 52
    vOF = 100
    NV = 196
    sW, sO, sOut = 24, 28, 32
    sWv, sRing, sRot, sNB = 36, 37, 38, 39
    sBlk = 40
    sQrow = 44
    sT0, sT1, sT2, sT3 = 50, 51, 52, 53
    sS, sRev = 54, 55
    A(f".globl {name}\n.p2align 8\n.type {name},@function\n{name}:")
    A("s_cmp_ge_u32 s2, 256\ns_cbranch_scc1 L_k2_done")
    if stamp: A("s_memrealtime s[70:71]")
    A(f"s_and_b32 {s(sT0)}, s2, 7\ns_lshl_b32 {s(sT0)}, {s(sT0)}, 5\ns_lshr_b32 {s(sT1)}, s2, 3\ns_add_u32 {s(sT0)}, {s(sT0)}, {s(sT1)}")
    A(f"s_cmp_ge_u32 {s(sT0)}, 252\ns_cbranch_scc1 L_k2_done")
    A("s_load_dwordx2 s[4:5], s[0:1], 32")
    A("s_load_dwordx2 s[6:7], s[0:1], 72")
    A("s_load_dwordx2 s[8:9], s[0:1], 80")
    A("s_load_dwordx2 s[10:11], s[0:1], 96")
    A(f"v_lshrrev_b32 {v(vT)}, 6, v0\nv_and_b32 {v(vL)}, 63, v0\nv_readfirstlane_b32 {s(sWv)}, {v(vT)}")
    A(f"s_cmp_ge_u32 {s(sT0)}, 126\ns_cselect_b32 s12, 1, 0\ns_cselect_b32 {s(sT1)}, 126, 0\ns_sub_u32 {s(sT0)}, {s(sT0)}, {s(sT1)}")
    A(f"s_mul_i32 s13, {s(sT0)}, 7282\ns_lshr_b32 s13, s13, 16")
    A(f"s_mul_i32 {s(sT1)}, s13, 9\ns_sub_u32 s14, {s(sT0)}, {s(sT1)}")
    A(f"s_and_b32 {s(sRot)}, {s(sT0)}, 31")
    A(f"s_mul_i32 {s(sT1)}, s13, 3\ns_lshl_b32 {s(sT2)}, s13, 1\ns_add_u32 {s(sT2)}, {s(sT2)}, 4")
    A(f"s_cmp_lt_u32 s13, 4\ns_cselect_b32 s15, {s(sT1)}, {s(sT2)}\ns_cselect_b32 {s(sNB)}, 3, 2")
    A(f"s_lshl_b32 {s(sRing)}, {s(sWv)}, 15")
    A("s_waitcnt lgkmcnt(0)")
    A("s_cmp_eq_u32 s12, 0\ns_cselect_b32 s4, s4, s6\ns_cselect_b32 s5, s5, s7")
    A(f"s_lshl_b32 {s(sT1)}, s14, 7")
    A(f"s_add_u32 {s(sW)}, s4, {s(sT1)}\ns_addc_u32 {s(sW+1)}, s5, 0\ns_and_b32 {s(sW+1)}, {s(sW+1)}, 0xffff")
    A(f"s_sub_u32 {s(sW+2)}, 4718592, {s(sT1)}\ns_mov_b32 {s(sW+3)}, 0x20000")
    A(f"s_lshl_b32 {s(sT1)}, s12, 22")
    A(f"s_add_u32 {s(sO)}, s10, {s(sT1)}\ns_addc_u32 {s(sO+1)}, s11, 0\ns_and_b32 {s(sO+1)}, {s(sO+1)}, 0xffff")
    A(f"s_mov_b32 {s(sO+2)}, 0x400000\ns_mov_b32 {s(sO+3)}, 0x20000")
    A(f"s_mov_b32 {s(sOut)}, s8\ns_and_b32 {s(sOut+1)}, s9, 0xffff\ns_mov_b32 {s(sOut+2)}, 1179648\ns_mov_b32 {s(sOut+3)}, 0x20000")
    for j in range(3):
        A(f"s_add_u32 {s(sT0)}, s15, {j}")
        A(f"s_lshr_b32 {s(sT1)}, {s(sT0)}, 2\ns_and_b32 {s(sT2)}, {s(sT0)}, 3")
        A(f"s_lshl_b32 {s(sT1)}, {s(sT1)}, 19\ns_lshl_b32 {s(sT2)}, {s(sT2)}, 10\ns_add_u32 {s(sBlk+j)}, {s(sT1)}, {s(sT2)}")
        A(f"s_mul_i32 {s(sT0)}, {s(sT0)}, {16*1152*2}\ns_mul_i32 {s(sT1)}, s12, 1152\ns_add_u32 {s(sT0)}, {s(sT0)}, {s(sT1)}")
        A(f"s_lshl_b32 {s(sT1)}, s14, 7\ns_add_u32 {s(sQrow+j)}, {s(sT0)}, {s(sT1)}")
    L = v(vL); T0, T1, T2, T3 = (v(vT+i) for i in range(4))
    A(f"v_lshlrev_b32 {v(vOl)}, 4, {L}")
    A(f"v_bfe_u32 {T0}, {L}, 4, 2\nv_lshlrev_b32 {T0}, 1, {T0}\nv_and_b32 {T1}, 7, {L}\nv_xor_b32 {T0}, {T0}, {T1}\nv_lshlrev_b32 {T0}, 4, {T0}")
    A(f"v_lshrrev_b32 {T1}, 3, {L}\nv_mul_u32_u24 {T1}, 1152, {T1}\nv_add_u32 {v(vWd)}, {T0}, {T1}")
    for j in range(1, 4): A(f"v_add_u32 {v(vWd+j)}, {j*8192}, {v(vWd)}")
    A(f"v_bfe_u32 {T0}, {L}, 4, 1\nv_lshlrev_b32 {T0}, 1, {T0}\nv_bfe_u32 {T1}, {L}, 3, 1\nv_add_u32 {T0}, {T0}, {T1}")
    A(f"v_lshlrev_b32 {T0}, 1, {T0}\nv_bfe_u32 {T1}, {L}, 1, 1\nv_xor_b32 {T0}, {T0}, {T1}\nv_lshlrev_b32 {T0}, 4, {T0}")
    A(f"v_lshrrev_b32 {T1}, 5, {L}\nv_lshlrev_b32 {T1}, 4, {T1}\nv_bfe_u32 {T2}, {L}, 4, 1\nv_lshlrev_b32 {T2}, 2, {T2}\nv_add_u32 {T1}, {T1}, {T2}")
    A(f"v_bfe_u32 {T2}, {L}, 2, 2\nv_add_u32 {T1}, {T1}, {T2}\nv_lshlrev_b32 {T1}, 7, {T1}\nv_add_u32 {T0}, {T0}, {T1}")
    A(f"v_and_b32 {T1}, 1, {L}\nv_lshlrev_b32 {T1}, 3, {T1}\nv_add_u32 {T0}, {T0}, {T1}\nv_add_u32 {v(vWa)}, {s(sRing)}, {T0}")
    for nt in range(1, 4): A(f"v_xor_b32 {v(vWa+nt)}, {nt<<5}, {v(vWa)}")
    for i in range(48): A(f"v_mov_b32 {v(vAcc+i)}, 0")
    A(f"s_cmp_eq_u32 {s(sNB)}, 3\ns_cbranch_scc1 L_k2_nb3")
    for nb in (2, 3):
        if nb == 3: A("L_k2_nb3:")
        per = 4 + nb
        def issue(slot, ireg):
            A(f"s_add_u32 {s(sT0)}, {s(ireg)}, {s(sRot)}\ns_and_b32 {s(sT0)}, {s(sT0)}, 31\ns_lshl_b32 {s(sT1)}, {s(sWv)}, 5\ns_add_u32 {s(sT0)}, {s(sT0)}, {s(sT1)}")
            A(f"s_mul_i32 {s(sT1)}, {s(sT0)}, 36864")
            A(f"s_add_u32 m0, {s(sRing)}, {slot*4096}")
            A(f"s_lshl_b32 {s(sT0)}, {s(sT0)}, 12")
            for j in range(4):
                A(f"buffer_load_dwordx4 {v(vWd+j)}, {s(sW,4)}, {s(sT1)} offen offset:{j*1024} {wflag} lds")
            for j in range(nb):
                A(f"s_add_u32 {s(sT2)}, {s(sT0)}, {s(sBlk+j)}")
                A(f"buffer_load_dwordx4 {v(vOF+(slot*3+j)*4,4)}, {v(vOl)}, {s(sO,4)}, {s(sT2)} offen {oflag}")
            A(f"s_add_u32 {s(ireg)}, {s(ireg)}, 1")
        def compute(slot):
            buf = vAF + (slot & 1) * 16
            for nt in range(4):
                for u in range(2):
                    A(f"ds_read_b64_tr_b16 {v(buf+nt*4+u*2,2)}, {v(vWa+nt)} offset:{slot*4096 + u*1024}")
            for nt in range(4):
                A(f"s_waitcnt lgkmcnt({6-2*nt})")
                for j in range(nb):
                    acc = v(vAcc + (j*4+nt)*4, 4)
                    A(f"v_mfma_f32_16x16x32_bf16 {acc}, {v(buf+nt*4,4)}, {v(vOF+(slot*3+j)*4,4)}, {acc}")
        A(f"s_mov_b32 {s(sS)}, 0")
        for slot in range(D): issue(slot, sS)
        A(f"s_mov_b32 {s(sRev)}, 0")
        A(f"L_k2_loop{nb}:")
        for slot in range(D):
            A(f"s_waitcnt vmcnt({(D-1)*per})")
            compute(slot)
            issue(slot, sS)
        A(f"s_add_u32 {s(sRev)}, {s(sRev)}, 1\ns_cmp_lt_u32 {s(sRev)}, {32//D - 1}\ns_cbranch_scc1 L_k2_loop{nb}")
        for slot in range(D):
            A(f"s_waitcnt vmcnt({(D-1-slot)*per})")
            compute(slot)
        A("s_nop 7")
        A(f"v_add_u32 {T0}, {s(sRing)}, {v(vOl)}")
        for j in range(nb):
            for nt in range(4):
                A(f"ds_write_b128 {T0}, {v(vAcc+(j*4+nt)*4,4)} offset:{(j*4+nt)*1024}")
        A("s_waitcnt lgkmcnt(0)\ns_barrier")
        A(f"s_lshl_b32 {s(sT0)}, {s(sWv)}, 10")
        A(f"v_add_u32 {T0}, {s(sT0)}, {v(vOl)}")
        A(f"v_add_u32 {T1}, 65536, {T0}")
        for j in range(nb):
            for w in range(4):
                ad = T0 if w < 2 else T1
                A(f"ds_read_b128 {v(vOF+(j*4+w)*4,4)}, {ad} offset:{(w&1)*32768 + j*4096}")
        A(f"v_and_b32 {T2}, 15, {L}\nv_mul_u32_u24 {T2}, 2304, {T2}\nv_lshrrev_b32 {T3}, 4, {L}\nv_lshlrev_b32 {T3}, 3, {T3}\nv_add_u32 {T2}, {T2}, {T3}")
        A(f"s_lshl_b32 {s(sT0)}, {s(sWv)}, 5\nv_add_u32 {T2}, {s(sT0)}, {T2}")
        A("s_waitcnt lgkmcnt(0)")
        for j in range(nb):
            b = vOF + j*16
            for r in range(4):
                A(f"v_add_f32 {v(b+r)}, {v(b+r)}, {v(b+4+r)}")
                A(f"v_add_f32 {v(b+8+r)}, {v(b+8+r)}, {v(b+12+r)}")
            for r in range(4): A(f"v_add_f32 {v(b+r)}, {v(b+r)}, {v(b+8+r)}")
            A(f"v_cvt_pk_bf16_f32 {v(b+4)}, {v(b)}, {v(b+1)}\nv_cvt_pk_bf16_f32 {v(b+5)}, {v(b+2)}, {v(b+3)}")
            A(f"buffer_store_dwordx2 {v(b+4,2)}, {T2}, {s(sOut,4)}, {s(sQrow+j)} offen")
        if nb == 2: A("s_branch L_k2_fin")
    A("L_k2_fin:")
    if stamp:
        A("s_waitcnt vmcnt(0)\ns_memrealtime s[76:77]\ns_waitcnt lgkmcnt(0)")
        A(f"s_lshl_b32 {s(sT0)}, s2, 2\ns_add_u32 {s(sT0)}, {s(sT0)}, {s(sWv)}\ns_lshl_b32 {s(sT0)}, {s(sT0)}, 4\ns_add_u32 {s(sT0)}, {s(sT0)}, 0x2100000")
        A(f"v_mov_b32 v8, s70\nv_mov_b32 v9, s70\nv_mov_b32 v10, s76\nv_mov_b32 v11, s76\nv_mov_b32 v5, {s(sT0)}")
        A(f"v_cmp_eq_u32 vcc, 0, {L}\ns_and_saveexec_b64 s[78:79], vcc")
        A("global_store_dwordx4 v5, v[8:11], s[10:11]")
    A("L_k2_done:\ns_endpgm")
    return A.text(), kd(name, 256, 102, 256)
```

```python
import sys, json
from k1 import gen_k1
from k2 import gen_k2
KNAME = "concat_heads__gqa_block_cached__mha_block_cached__near_ridge"
HEADER = open("cdna_kernels/" + KNAME + ".s.ref").read().split("; Override launch")[0]
def build(opt):
    k1n, k2n = "attn_kernel", "oproj_kernel"
    t1, d1 = gen_k1(k1n, opt); t2, d2 = gen_k2(k2n, opt)
    out = HEADER
    out += f"; @launch kernel={k1n} grid=(256,1,1) block=(256,1,1) lds=163840\n"
    if not opt.get("k1only"):
        out += f"; @launch kernel={k2n} grid=(256,1,1) block=(256,1,1) lds=131072\n"
    out += '.amdgcn_target "amdgcn-amd-amdhsa--gfx950"\n.text\n' + t1 + t2
    out += '.section .rodata,"a"\n.p2align 6\n' + d1 + ".p2align 6\n" + d2
    return out
if __name__ == "__main__":
    path = sys.argv[1]
    opt = json.loads(sys.argv[2]) if len(sys.argv) > 2 else {}
    open(path, "w").write(build(opt))
```

```python
from asmlib import *
import math

LOG2E = 1.4426950408889634
QSCALE = LOG2E / math.sqrt(128.0)
def f2u(x):
    import struct
    return struct.unpack("<I", struct.pack("<f", x))[0]

RING = 32768
KA, VA, KB, VB = 0, 8192, 16384, 24576
EXTRA = 131072
vTID, vLANE = 0, 1
vDMA = 2
vKa = 6
vVa = 14
vM = 22
vMT = 24
vL = 26
vT = 30
vNM = 38
vQ = 40
vS = 104
vKF = 136
vVF = 168
vP = 200
NV = 216
vQacc = 104
vWF2 = 40
vWdma = 200
vXdma = 204
vWa = 205
vXa = 207
sK, sV, sX, sW, sO = 24, 28, 32, 36, 40
sWv, sHH, sKH, sRing, sKoff, sCnt = 44, 45, 46, 47, 48, 49
sT0, sT1, sT2, sT3 = 50, 51, 52, 53
sRot, sB, sH0, sType = 54, 55, 56, 57
sTile = 58
sXw, sXl = 59, 60
sC = 61
sM0, sM1 = 64, 66
sRet = 68

class VQ:
    def __init__(self, A): self.q = []; self.A = A
    def issue(self, tag): self.q.append(tag)
    def wait(self, *tags):
        idx = [i for i, t in enumerate(self.q) if t in tags]
        if not idx: return
        last = max(idx)
        n = len(self.q) - 1 - last
        assert n <= 63, n
        self.A(f"s_waitcnt vmcnt({n})")
        self.q = self.q[last + 1:]
    def wait_all(self):
        self.A("s_waitcnt vmcnt(0)"); self.q = []

def gen_k1(name, opt):
    A = Asm()
    fine = opt.get("fine", True)
    kvflag = opt.get("kvflag", "nt")
    wflag = opt.get("wflag", "nt"); xflag = opt.get("xflag", "")
    k0_k = opt.get("k0_k", 23); v0_k = opt.get("v0_k", 36)
    assert k0_k >= 23 and v0_k >= 27
    THR = opt.get("thr", 8.0)
    dbg = opt.get("dbg", None)
    stamp = opt.get("stamp", False)
    fst = opt.get("fstamp", False)
    def ST(i):
        if fst and (fst is True or i in fst):
            A("s_memrealtime s[80:81]\ns_memtime s[82:83]\ns_waitcnt lgkmcnt(0)"); A(f"v_writelane_b32 v250, s80, {i}"); A(f"v_writelane_b32 v250, s82, {i+32}")
    A(f".globl {name}\n.p2align 8\n.type {name},@function\n{name}:")
    A(f"s_cmp_ge_u32 s2, 256\ns_cbranch_scc1 L_k1_done")
    if stamp: A("s_memrealtime s[70:71]")
    A("s_load_dwordx8 s[4:11], s[0:1], 0")
    A("s_load_dwordx8 s[12:19], s[0:1], 40")
    A("s_load_dwordx2 s[20:21], s[0:1], 96")
    A(f"v_lshrrev_b32 {v(vT)}, 6, v0")
    A(f"v_and_b32 {v(vLANE)}, 63, v0")
    A(f"v_readfirstlane_b32 {s(sWv)}, {v(vT)}")
    A(f"s_and_b32 {s(sT0)}, s2, 7")
    A(f"s_lshr_b32 {s(sT1)}, s2, 3")
    A(f"s_and_b32 {s(sType)}, {s(sT1)}, 1")
    A(f"s_lshr_b32 {s(sT1)}, {s(sT1)}, 1")
    A(f"s_and_b32 {s(sT2)}, {s(sT1)}, 1")
    A(f"s_lshr_b32 {s(sB)}, {s(sT1)}, 1")
    A(f"s_lshl_b32 {s(sH0)}, {s(sT0)}, 2")
    A(f"s_lshl_b32 {s(sT3)}, {s(sT2)}, 1")
    A(f"s_add_u32 {s(sH0)}, {s(sH0)}, {s(sT3)}")
    A(f"s_lshl_b32 {s(sT3)}, {s(sT2)}, 2")
    A(f"s_add_u32 {s(sRot)}, {s(sB)}, {s(sT3)}")
    A(f"s_and_b32 {s(sRot)}, {s(sRot)}, 7")
    A(f"s_and_b32 {s(sHH)}, {s(sWv)}, 1")
    A(f"s_lshr_b32 {s(sKH)}, {s(sWv)}, 1")
    A(f"s_lshl_b32 {s(sRing)}, {s(sWv)}, 15")
    A("s_waitcnt lgkmcnt(0)")
    A(f"s_cmp_eq_u32 {s(sType)}, 0")
    for i in range(8): A(f"s_cselect_b32 {s(4+i)}, {s(4+i)}, {s(12+i)}")
    A(f"s_add_u32 {s(sT0)}, {s(sH0)}, {s(sHH)}")
    A(f"s_lshl_b32 {s(sT1)}, {s(sB)}, 5")
    A(f"s_add_u32 {s(sT1)}, {s(sT1)}, {s(sT0)}")
    A(f"s_lshr_b32 {s(sT2)}, {s(sH0)}, 1")
    A(f"s_lshl_b32 {s(sT3)}, {s(sB)}, 4")
    A(f"s_add_u32 {s(sT2)}, {s(sT2)}, {s(sT3)}")
    A(f"s_cmp_eq_u32 {s(sType)}, 0")
    A(f"s_cselect_b32 {s(sT2)}, {s(sT2)}, {s(sT1)}")
    A(f"s_lshl_b32 {s(sT2)}, {s(sT2)}, 18")
    for srd, p in ((sK, 6), (sV, 8)):
        A(f"s_add_u32 {s(srd)}, {s(p)}, {s(sT2)}")
        A(f"s_addc_u32 {s(srd+1)}, {s(p+1)}, 0")
        A(f"s_and_b32 {s(srd+1)}, {s(srd+1)}, 0xffff")
        A(f"s_mov_b32 {s(srd+2)}, 0x40000")
        A(f"s_mov_b32 {s(srd+3)}, 0x20000")
    A(f"s_lshl_b32 {s(sT2)}, {s(sType)}, 8")
    A(f"s_add_u32 {s(sT1)}, {s(sT1)}, {s(sT2)}")
    A(f"s_lshl_b32 {s(sT1)}, {s(sT1)}, 14")
    A(f"s_add_u32 {s(sO)}, s20, {s(sT1)}")
    A(f"s_addc_u32 {s(sO+1)}, s21, 0")
    A(f"s_and_b32 {s(sO+1)}, {s(sO+1)}, 0xffff")
    A(f"s_mov_b32 {s(sO+2)}, 16384")
    A(f"s_mov_b32 {s(sO+3)}, 0x20000")
    A(f"s_mul_i32 {s(sT1)}, {s(sB)}, 73728")
    A(f"s_add_u32 {s(sX)}, s4, {s(sT1)}")
    A(f"s_addc_u32 {s(sX+1)}, s5, 0")
    A(f"s_and_b32 {s(sX+1)}, {s(sX+1)}, 0xffff")
    A(f"s_mov_b32 {s(sX+2)}, 73728")
    A(f"s_mov_b32 {s(sX+3)}, 0x20000")
    A(f"s_lshl_b32 {s(sT1)}, {s(sT0)}, 8")
    A(f"s_lshl_b32 {s(sT2)}, {s(sKH)}, 7")
    A(f"s_add_u32 {s(sT1)}, {s(sT1)}, {s(sT2)}")
    A(f"s_add_u32 {s(sW)}, s10, {s(sT1)}")
    A(f"s_addc_u32 {s(sW+1)}, s11, 0")
    A(f"s_and_b32 {s(sW+1)}, {s(sW+1)}, 0xffff")
    A(f"s_sub_u32 {s(sW+2)}, 4718592, {s(sT1)}")
    A(f"s_mov_b32 {s(sW+3)}, 0x20000")
    L = v(vLANE); T0, T1, T2, T3 = (v(vT + i) for i in range(4))
    A(f"v_lshrrev_b32 {T0}, 4, {L}")
    A(f"s_lshl_b32 {s(sT1)}, {s(sHH)}, 2")
    A(f"v_or_b32 {T0}, {s(sT1)}, {T0}")
    A(f"v_and_b32 {T1}, 7, {L}")
    A(f"v_xor_b32 {T0}, {T0}, {T1}")
    A(f"v_lshlrev_b32 {T0}, 4, {T0}")
    A(f"v_lshrrev_b32 {T1}, 3, {L}")
    A(f"v_mul_u32_u24 {T2}, 1152, {T1}")
    A(f"v_add_u32 {v(vXdma)}, {T0}, {T2}")
    A(f"v_lshrrev_b32 {T0}, 4, {L}")
    A(f"v_and_b32 {T0}, 1, {T0}")
    A(f"v_lshlrev_b32 {T0}, 2, {T0}")
    A(f"v_and_b32 {T2}, 7, {L}")
    A(f"v_xor_b32 {T0}, {T0}, {T2}")
    A(f"v_lshlrev_b32 {T0}, 4, {T0}")
    A(f"v_lshlrev_b32 {T1}, 13, {T1}")
    A(f"v_add_u32 {v(vWdma)}, {T0}, {T1}")
    for n in range(1, 4): A(f"v_add_u32 {v(vWdma+n)}, {n*64512}, {v(vWdma)}")
    Q = VQ(A)
    if fst: A("v_mov_b32 v250, 0")
    ST(0)
    XSLOT = [EXTRA + (i & 3)*8192 for i in range(9)]
    def tile_of(t, dst):
        A(f"s_add_u32 {s(dst)}, {s(sRot)}, {t}")
        A(f"s_cmp_ge_u32 {s(dst)}, 9")
        A(f"s_cselect_b32 {s(sT3)}, 9, 0")
        A(f"s_sub_u32 {s(dst)}, {s(dst)}, {s(sT3)}")
    def issue_x(t):
        tile_of(t, sT0)
        A(f"s_lshl_b32 {s(sT0)}, {s(sT0)}, 7")
        A(f"s_add_u32 {s(sT0)}, {s(sT0)}, {s(sXw)}")
        A(f"s_add_u32 m0, {s(sXl)}, {XSLOT[t]}")
        A(f"s_add_u32 {s(sT2)}, {s(sT0)}, {4*9216}")
        A(f"buffer_load_dwordx4 {v(vXdma)}, {s(sX,4)}, {s(sT0)} offen {xflag} lds"); Q.issue(f"x{t}")
        A(f"s_add_u32 m0, {s(sXl)}, {XSLOT[t] + 4096}")
        A("s_nop 0")
        A(f"buffer_load_dwordx4 {v(vXdma)}, {s(sX,4)}, {s(sT2)} offen {xflag} lds"); Q.issue(f"x{t}")
    WPOS = {0: KB, 1: KB+4096, 2: VB, 3: VB+4096, 4: KA, 5: KA+4096, 6: VA, 7: VA+4096, 8: KB, 9: KB+4096,
            10: KA, 11: KA+4096, 12: VA, 13: VA+4096, 14: VB, 15: VB+4096, 16: KB, 17: KB+4096}
    WISSUE = {4: 0, 5: 1, 6: 2, 7: 3, 8: 4, 9: 5, 14: 6, 15: 7, 10: 9, 11: 11, 12: 13, 13: 15, 16: 17, 17: 19}
    def issue_w(hs):
        tile_of(hs >> 1, sT0)
        A(f"s_lshl_b32 {s(sT0)}, {s(sT0)}, 19")
        A(f"s_add_u32 m0, {s(sRing)}, {WPOS[hs]}")
        if hs & 1: A(f"s_add_u32 {s(sT0)}, {s(sT0)}, {32*8192}")
        else: A("s_nop 0")
        for n in range(4):
            A(f"buffer_load_dwordx4 {v(vWdma+n)}, {s(sW,4)}, {s(sT0)} offen offset:{n*1024} {wflag} lds"); Q.issue(f"w{hs}")
    def issue_kv(srd, slot, tag, q=None):
        hs = 8192 if fine else 4096
        for half in range(2):
            A(f"s_add_u32 m0, {s(sRing)}, {slot + half*4096}")
            A(f"s_add_u32 {s(sT0)}, {s(sKoff)}, {half*hs}")
            for n in range(4):
                A(f"buffer_load_dwordx4 {v(vDMA+n)}, {s(srd,4)}, {s(sT0)} offen offset:{n*1024} {kvflag} lds")
                if q is not None: q.issue(tag)
    A(f"s_mov_b32 {s(sC)}, {f2u(QSCALE):#x}")
    A(f"s_mul_i32 {s(sXw)}, {s(sWv)}, 9216")
    A(f"s_lshl_b32 {s(sXl)}, {s(sWv)}, 10")
    if opt.get("warm", True):
        A(f"s_lshr_b32 {s(sT0)}, s2, 4\ns_lshl_b32 {s(sT0)}, {s(sT0)}, 2\ns_add_u32 {s(sT0)}, {s(sT0)}, {s(sWv)}")
        A(f"s_mov_b32 s12, s10\ns_and_b32 s13, s11, 0xffff\ns_mov_b32 s14, 4718592\ns_mov_b32 s15, 0x20000")
        A(f"s_mov_b32 s16, s4\ns_and_b32 s17, s5, 0xffff\ns_mov_b32 s18, 589824\ns_mov_b32 s19, 0x20000")
        A(f"v_lshlrev_b32 {T3}, 4, {L}")
        A(f"s_mul_i32 {s(sT1)}, {s(sT0)}, {9*8192}\ns_and_b32 {s(sT2)}, s2, 7\ns_lshl_b32 {s(sT2)}, {s(sT2)}, 10\ns_add_u32 {s(sT1)}, {s(sT1)}, {s(sT2)}")
        A(f"s_mul_i32 {s(sT0)}, {s(sT0)}, 9216")
        for i in range(9):
            A(f"buffer_load_dwordx4 v[104:107], {T3}, s[12:15], {s(sT1)} offen {wflag}"); Q.issue("warm")
            A(f"buffer_load_dwordx4 v[104:107], {T3}, s[16:19], {s(sT0)} offen {xflag}"); Q.issue("warm")
            if i < 8: A(f"s_add_u32 {s(sT1)}, {s(sT1)}, 8192\ns_add_u32 {s(sT0)}, {s(sT0)}, 1024")
    issue_x(0); issue_w(0); issue_w(1)
    ST(20)
    A(f"v_lshrrev_b32 {T0}, 4, {L}")
    A(f"v_lshlrev_b32 {T1}, 2, {T0}")
    A(f"v_and_b32 {T2}, 15, {L}")
    A(f"v_xor_b32 {T1}, {T1}, {T2}")
    A(f"v_lshlrev_b32 {T0}, 8, {T0}")
    for n in range(4):
        A(f"v_xor_b32 {T2}, {n}, {T1}")
        A(f"v_lshlrev_b32 {T2}, 4, {T2}")
        A(f"v_add_u32 {v(vDMA+n)}, {T0}, {T2}")
        if fine and n: A(f"v_add_u32 {v(vDMA+n)}, {n*1024}, {v(vDMA+n)}")
    A(f"s_lshl_b32 {s(sKoff)}, {s(sKH)}, {10 if fine else 13}")
    A(f"v_and_b32 {T0}, 31, {L}")
    A(f"v_and_b32 {T1}, 3, {T0}")
    A(f"v_lshlrev_b32 {T1}, 2, {T1}")
    A(f"v_bfe_u32 {T2}, {T0}, 2, 2")
    A(f"v_or_b32 {T1}, {T1}, {T2}")
    A(f"v_lshrrev_b32 {T2}, 5, {L}")
    A(f"v_xor_b32 {T1}, {T1}, {T2}")
    A(f"v_lshlrev_b32 {T1}, 4, {T1}")
    A(f"v_lshlrev_b32 {T0}, 8, {T0}")
    A(f"v_add_u32 {T0}, {T0}, {T1}")
    A(f"v_add_u32 {v(vKa)}, {s(sRing)}, {T0}")
    for kk in range(1, 8): A(f"v_xor_b32 {v(vKa+kk)}, {kk<<5}, {v(vKa)}")
    A(f"v_bfe_u32 {T0}, {L}, 4, 1")
    A(f"v_lshlrev_b32 {T0}, 1, {T0}")
    A(f"v_bfe_u32 {T1}, {L}, 1, 1")
    A(f"v_or_b32 {T0}, {T0}, {T1}")
    A(f"v_bfe_u32 {T1}, {L}, 2, 2")
    A(f"v_lshlrev_b32 {T2}, 2, {T1}")
    A(f"v_xor_b32 {T0}, {T0}, {T2}")
    A(f"v_lshrrev_b32 {T2}, 5, {L}")
    A(f"v_xor_b32 {T0}, {T0}, {T2}")
    A(f"v_lshlrev_b32 {T0}, 4, {T0}")
    A(f"v_lshlrev_b32 {T2}, 2, {T2}")
    A(f"v_add_u32 {T1}, {T1}, {T2}")
    A(f"v_lshlrev_b32 {T1}, 8, {T1}")
    A(f"v_add_u32 {T0}, {T0}, {T1}")
    A(f"v_and_b32 {T1}, 1, {L}")
    A(f"v_lshlrev_b32 {T1}, 3, {T1}")
    A(f"v_add_u32 {T0}, {T0}, {T1}")
    A(f"v_add_u32 {T0}, {s(sRing)}, {T0}")
    for dt in range(4):
        for u in range(2):
            A(f"v_xor_b32 {v(vVa+dt*2+u)}, {(dt<<6)|(u<<5)}, {T0}")
            if u: A(f"v_add_u32 {v(vVa+dt*2+u)}, 2048, {v(vVa+dt*2+u)}")
    A(f"v_bfe_u32 {T0}, {L}, 4, 1")
    A(f"v_lshlrev_b32 {T0}, 1, {T0}")
    A(f"v_and_b32 {T1}, 1, {L}")
    A(f"v_or_b32 {T0}, {T0}, {T1}")
    A(f"v_bfe_u32 {T1}, {L}, 3, 1")
    A(f"v_lshlrev_b32 {T1}, 2, {T1}")
    A(f"v_xor_b32 {T0}, {T0}, {T1}")
    A(f"v_lshlrev_b32 {T0}, 4, {T0}")
    A(f"v_bfe_u32 {T1}, {L}, 2, 2")
    A(f"v_lshrrev_b32 {T2}, 5, {L}")
    A(f"v_lshlrev_b32 {T2}, 3, {T2}")
    A(f"v_add_u32 {T1}, {T1}, {T2}")
    A(f"v_lshlrev_b32 {T1}, 7, {T1}")
    A(f"v_add_u32 {T0}, {T0}, {T1}")
    A(f"v_bfe_u32 {T1}, {L}, 1, 1")
    A(f"v_lshlrev_b32 {T1}, 3, {T1}")
    A(f"v_add_u32 {T0}, {T0}, {T1}")
    A(f"v_add_u32 {T0}, {s(sRing)}, {T0}")
    A(f"v_mov_b32 {v(vWa)}, {T0}")
    A(f"v_xor_b32 {v(vWa+1)}, 64, {v(vWa)}")
    A(f"v_and_b32 {T0}, 31, {L}")
    A(f"v_bfe_u32 {T1}, {T0}, 1, 3")
    A(f"v_lshrrev_b32 {T2}, 5, {L}")
    A(f"v_xor_b32 {T1}, {T1}, {T2}")
    A(f"v_lshlrev_b32 {T1}, 4, {T1}")
    A(f"v_lshlrev_b32 {T0}, 7, {T0}")
    A(f"v_add_u32 {T0}, {T0}, {T1}")
    A(f"v_mov_b32 {v(vXa)}, {T0}")
    for kk in range(1, 4): A(f"v_xor_b32 {v(vXa+kk)}, {kk<<5}, {v(vXa)}")
    ST(23)
    for i in range(128): A(f"v_accvgpr_write_b32 {a(i)}, 0")
    for qh in range(2):
        A(f"v_mov_b32 {v(vL+2*qh)}, 0"); A(f"v_mov_b32 {v(vL+2*qh+1)}, 0")
    issue_x(1); issue_w(2); issue_w(3)
    if k0_k == -1: issue_kv(sK, KA, "K0", Q)
    if v0_k == -1: issue_kv(sV, VA, "V0", Q)
    ST(24)
    vXc = vXa + 4
    def rbuf(k): return vWF2 + (k % 3) * 16
    def read_list(k):
        hs, kl, t, kk = k >> 1, k & 1, k >> 2, k & 3
        buf = rbuf(k); out = []
        for dt in range(2):
            for u in range(2):
                out.append(f"ds_read_b64_tr_b16 {v(buf+dt*4+u*2,2)}, {v(vWa+dt)} offset:{WPOS[hs] + kl*2048 + u*512}")
        for qh in range(2):
            out.append(f"ds_read_b128 {v(buf+8+qh*4,4)}, {v(vXc+kk)} offset:{qh*4096}")
        return out
    def pre_reads(k):
        hs, t, kk = k >> 1, k >> 2, k & 3
        if kk == 0:
            Q.wait(f"x{t}", f"w{hs}")
            if not (opt.get("exp_nobar") and t > 0): A("s_barrier")
            for j in range(4): A(f"v_add_u32 {v(vXc+j)}, {XSLOT[t]}, {v(vXa+j)}")
        elif k & 1 == 0:
            Q.wait(f"w{hs}")
    pre_reads(0)
    ST(1)
    for i in read_list(0): A(i)
    for i in read_list(1): A(i)
    for k in range(36):
        hs = k >> 1
        rl = []
        if k + 2 < 36:
            pre_reads(k + 2); rl = read_list(k + 2)
        A(f"s_waitcnt lgkmcnt({6 if k + 1 < 36 else 0})")
        buf = rbuf(k); n = 0
        for dt in range(2):
            for qh in range(2):
                acc = v(vQacc + (dt*2+qh)*16, 16)
                c = "0" if k == 0 else acc
                A(f"v_mfma_f32_32x32x16_bf16 {acc}, {v(buf+dt*4,4)}, {v(buf+8+qh*4,4)}, {c}")
                if opt.get("exp_noilv"):
                    if n == 3:
                        for i in rl: A(i)
                else:
                    for i in rl[2*n:2*n+2]: A(i)
                n += 1
        if k == 0: issue_x(2)
        if k == 2: issue_x(3)
        for n_, kk_ in WISSUE.items():
            if kk_ == k: issue_w(n_)
        if (k + 2) & 3 == 0 and k + 2 < 36 and ((k + 2) >> 2) >= 2 and ((k + 2) >> 2) + 2 < 9: issue_x(((k + 2) >> 2) + 2)
        if k == k0_k: issue_kv(sK, KA, "K0", Q)
        if k == v0_k: issue_kv(sV, VA, "V0", Q)
        if k & 3 == 3: ST(2 + (k >> 2))
    A("s_nop 7\ns_nop 5")
    ST(25)
    A("s_barrier")
    ST(26)
    A(f"s_lshl_b32 {s(sT1)}, {s(sWv)}, 13")
    A(f"v_lshlrev_b32 {T0}, 4, {L}")
    A(f"v_add_u32 {T1}, {s(sT1)}, {T0}")
    A(f"v_add_u32 {T1}, {EXTRA}, {T1}")
    A(f"s_lshl_b32 {s(sT1)}, {s(sHH)}, 13")
    A(f"v_add_u32 {T2}, {s(sT1)}, {T0}")
    A(f"v_add_u32 {T2}, {EXTRA}, {T2}")
    for dt in range(2):
        for qh in range(2):
            acc = vQacc + (dt*2+qh)*16
            for m in range(2):
                dst = vVF + ((dt*2+m)*2+qh)*4
                for j in range(4): A(f"v_cvt_pk_bf16_f32 {v(dst+j)}, {v(acc+8*m+2*j)}, {v(acc+8*m+2*j+1)}")
    if v0_k == 36: issue_kv(sV, VA, "V0", Q)
    ST(27)
    for f in range(8): A(f"ds_write_b128 {T1}, {v(vVF+f*4,4)} offset:{f*1024}")
    A("s_waitcnt lgkmcnt(0)")
    A("s_barrier")
    ST(28)
    for half in range(2):
        for kl in range(4):
            for qh in range(2):
                kk = half*4 + kl
                A(f"ds_read_b128 {v(vQ+qh*32+kk*4,4)}, {T2} offset:{half*16384 + (kl*2+qh)*1024}")
        A("s_waitcnt lgkmcnt(0)")
    if dbg == "q":
        A(f"s_lshl_b32 {s(sT0)}, s2, 2"); A(f"s_add_u32 {s(sT0)}, {s(sT0)}, {s(sWv)}"); A(f"s_lshl_b32 {s(sT0)}, {s(sT0)}, 14")
        A(f"s_add_u32 {s(sT0)}, {s(sT0)}, 0x1000000")
        A(f"v_lshlrev_b32 {T0}, 4, {L}"); A(f"v_add_u32 {T0}, {s(sT0)}, {T0}")
        for f in range(16):
            A(f"global_store_dwordx4 {T0}, {v(vQ+f*4,4)}, s[20:21]"); A(f"v_add_u32 {T0}, 1024, {T0}")
        A("s_waitcnt vmcnt(0)")
    ST(19)
    if stamp: A("s_memrealtime s[72:73]")
    A(f"s_add_u32 {s(sKoff)}, {s(sKoff)}, 16384")
    def tile(par, kind, uid):
        ks, vs = (KA, VA) if par == 0 else (KB, VB)
        kw = {"first": 8, "mid": 24, "pen": 24, "last": 8}[kind]
        vw = {"first": 16, "mid": 24, "pen": 16, "last": 0}[kind]
        A(f"s_waitcnt vmcnt({kw})")
        for kk in range(8): A(f"ds_read_b128 {v(vKF+kk*4,4)}, {v(vKa+kk)} offset:{ks}")
        for kk in range(8):
            A(f"s_waitcnt lgkmcnt({7-kk})")
            for qh in range(2):
                acc = v(vS+16*qh, 16)
                A(f"v_mfma_f32_32x32x16_bf16 {acc}, {v(vKF+kk*4,4)}, {v(vQ+qh*32+kk*4,4)}, {'0' if kk == 0 else acc}")
        if kind == "first": issue_kv(sK, KB, None); A("s_nop 1")
        elif kind == "mid": issue_kv(sK, ks, None); A("s_nop 1")
        else: A("s_nop 7\ns_nop 5")
        for qh in range(2):
            b = vS + 16*qh; t = v(vT+qh)
            A(f"v_max3_f32 {t}, {v(b)}, {v(b+1)}, {v(b+2)}")
            for i in range(3, 15, 2): A(f"v_max3_f32 {t}, {t}, {v(b+i)}, {v(b+i+1)}")
            A(f"v_max_f32 {t}, {t}, {v(b+15)}")
        if kind == "first":
            for qh in range(2): A(f"v_mov_b32 {v(vT+2+qh)}, {v(vT+qh)}")
            A("s_nop 1")
            for qh in range(2): A(f"v_permlane32_swap_b32 {v(vT+qh)}, {v(vT+2+qh)}")
            A("s_nop 1")
            for qh in range(2): A(f"v_max_f32 {v(vM+qh)}, {v(vT+qh)}, {v(vT+2+qh)}")
            for qh in range(2):
                A(f"v_add_f32 {v(vMT+qh)}, {f2u(THR/QSCALE):#x}, {v(vM+qh)}")
                A(f"v_mul_f32 {v(vNM+qh)}, {f2u(-QSCALE):#x}, {v(vM+qh)}")
        else:
            A(f"v_cmp_gt_f32 vcc, {v(vT)}, {v(vMT)}")
            A(f"v_cmp_gt_f32 {s(sM0,2)}, {v(vT+1)}, {v(vMT+1)}")
            A(f"s_or_b64 {s(sM0,2)}, {s(sM0,2)}, vcc")
            A(f"s_cbranch_scc0 L_k1_back{uid}")
            A(f"s_call_b64 {s(sRet,2)}, L_k1_rare")
            A(f"L_k1_back{uid}:")
        for qh in range(2):
            b = vS + 16*qh
            for i in range(16): A(f"v_fma_f32 {v(b+i)}, {v(b+i)}, {s(sC)}, {v(vNM+qh)}")
            for i in range(16): A(f"v_exp_f32 {v(b+i)}, {v(b+i)}")
        for qh in range(2):
            b = vS + 16*qh
            for i in range(16): A(f"v_add_f32 {v(vL+2*qh+(i&1))}, {v(vL+2*qh+(i&1))}, {v(b+i)}")
            for m in range(2):
                for j in range(4): A(f"v_cvt_pk_bf16_f32 {v(vP+qh*8+m*4+j)}, {v(b+8*m+2*j)}, {v(b+8*m+2*j+1)}")
        if kind == "first":
            issue_kv(sV, VB, None)
            A(f"s_add_u32 {s(sKoff)}, {s(sKoff)}, 16384")
        A(f"s_waitcnt vmcnt({vw})")
        for dt in range(4):
            for m in range(2):
                for u in range(2):
                    A(f"ds_read_b64_tr_b16 {v(vVF+(dt*2+m)*4+u*2,2)}, {v(vVa+dt*2+u)} offset:{vs + m*4096}")
        for dt in range(4):
            for m in range(2):
                A(f"s_waitcnt lgkmcnt({14-(dt*2+m)*2})")
                for qh in range(2):
                    acc = a((dt*2+qh)*16, 16)
                    A(f"v_mfma_f32_32x32x16_bf16 {acc}, {v(vVF+(dt*2+m)*4,4)}, {v(vP+qh*8+m*4,4)}, {acc}")
        if kind == "first":
            issue_kv(sK, KA, None); issue_kv(sV, VA, None)
            A(f"s_add_u32 {s(sKoff)}, {s(sKoff)}, 16384")
        elif kind == "mid":
            issue_kv(sV, vs, None)
            A(f"s_add_u32 {s(sKoff)}, {s(sKoff)}, 16384")
    tile(0, "first", 0)
    ST(29)
    A(f"s_mov_b32 {s(sTile)}, 1")
    A("L_k1_loop:")
    tile(1, "mid", 1)
    A(f"s_cmp_eq_u32 {s(sTile)}, 13")
    A("s_cbranch_scc1 L_k1_tail")
    tile(0, "mid", 2)
    A(f"s_add_u32 {s(sTile)}, {s(sTile)}, 2")
    A("s_branch L_k1_loop")
    A("L_k1_tail:")
    tile(0, "pen", 3)
    tile(1, "last", 4)
    A("s_branch L_k1_epi")
    A("L_k1_rare:")
    for qh in range(2): A(f"v_mov_b32 {v(vT+2+qh)}, {v(vT+qh)}")
    A("s_nop 1")
    for qh in range(2): A(f"v_permlane32_swap_b32 {v(vT+qh)}, {v(vT+2+qh)}")
    A("s_nop 1")
    for qh in range(2):
        A(f"v_max3_f32 {v(vT+qh)}, {v(vT+qh)}, {v(vT+2+qh)}, {v(vM+qh)}")
    for qh in range(2):
        A(f"v_sub_f32 {v(vT+2+qh)}, {v(vM+qh)}, {v(vT+qh)}")
    for qh in range(2): A(f"v_mul_f32 {v(vT+2+qh)}, {s(sC)}, {v(vT+2+qh)}")
    for qh in range(2): A(f"v_exp_f32 {v(vT+2+qh)}, {v(vT+2+qh)}")
    for qh in range(2):
        A(f"v_mov_b32 {v(vM+qh)}, {v(vT+qh)}")
        A(f"v_add_f32 {v(vMT+qh)}, {f2u(THR/QSCALE):#x}, {v(vT+qh)}")
        A(f"v_mul_f32 {v(vNM+qh)}, {f2u(-QSCALE):#x}, {v(vT+qh)}")
    for qh in range(2):
        for j in range(2): A(f"v_mul_f32 {v(vL+2*qh+j)}, {v(vL+2*qh+j)}, {v(vT+2+qh)}")
    for dt in range(4):
        for qh in range(2):
            base = (dt*2+qh)*16
            for r0 in range(0, 16, 4):
                for r in range(4): A(f"v_accvgpr_read_b32 {v(vT+4+r)}, {a(base+r0+r)}")
                for r in range(4): A(f"v_mul_f32 {v(vT+4+r)}, {v(vT+4+r)}, {v(vT+2+qh)}")
                for r in range(4): A(f"v_accvgpr_write_b32 {a(base+r0+r)}, {v(vT+4+r)}")
    A("s_nop 1")
    A(f"s_setpc_b64 {s(sRet,2)}")
    A("L_k1_epi:")
    ST(30)
    if stamp: A("s_memrealtime s[74:75]")
    A("s_waitcnt vmcnt(0)")
    MM = vT
    for qh in range(2):
        A(f"v_add_f32 {v(vL+2*qh)}, {v(vL+2*qh)}, {v(vL+2*qh+1)}")
        A(f"v_mov_b32 {v(vL+2*qh+1)}, {v(vL+2*qh)}")
    A("s_nop 1")
    for qh in range(2): A(f"v_permlane32_swap_b32 {v(vL+2*qh)}, {v(vL+2*qh+1)}")
    A("s_nop 1")
    for qh in range(2):
        A(f"v_add_f32 {v(MM+2+qh)}, {v(vL+2*qh)}, {v(vL+2*qh+1)}")
        A(f"v_mov_b32 {v(MM+qh)}, {v(vM+qh)}")
    A(f"v_lshlrev_b32 {v(vKa)}, 4, {L}")
    A(f"s_xor_b32 {s(sT0)}, {s(sRing)}, {2*RING}")
    A(f"v_add_u32 {v(vKa+1)}, {s(sT0)}, {v(vKa)}")
    A(f"v_add_u32 {v(vKa)}, {s(sRing)}, {v(vKa)}")
    A(f"ds_write_b128 {v(vKa)}, {v(MM,4)} offset:16384")
    A(f"v_bfe_u32 {v(vKa+2)}, {L}, 4, 1"); A(f"v_lshlrev_b32 {v(vKa+2)}, 10, {v(vKa+2)}")
    A(f"v_lshrrev_b32 {v(vKa+3)}, 5, {L}"); A(f"v_lshlrev_b32 {v(vKa+3)}, 8, {v(vKa+3)}")
    A(f"v_add_u32 {v(vKa+2)}, {v(vKa+2)}, {v(vKa+3)}")
    A(f"v_and_b32 {v(vKa+3)}, 15, {L}"); A(f"v_lshlrev_b32 {v(vKa+3)}, 4, {v(vKa+3)}")
    A(f"v_add_u32 {v(vKa+2)}, {v(vKa+2)}, {v(vKa+3)}")
    A(f"s_cmp_eq_u32 {s(sKH)}, 0")
    A("s_cbranch_scc0 L_k1_epi1")
    for kh in range(2):
        if kh == 1: A("L_k1_epi1:")
        keep = [2*kh, 2*kh+1]; send = [2*(1-kh), 2*(1-kh)+1]
        f = 0
        for dt in send:
            for qh in range(2):
                for rq in range(4):
                    A(f"ds_write_b128 {v(vKa)}, {a((dt*2+qh)*16+4*rq,4)} offset:{f*1024}"); f += 1
        A("s_waitcnt lgkmcnt(0)")
        A("s_barrier")
        A(f"ds_read_b128 {v(MM+4,4)}, {v(vKa+1)} offset:16384")
        for f in range(16): A(f"ds_read_b128 {v(vS+f*4,4)}, {v(vKa+1)} offset:{f*1024}")
        A("s_waitcnt lgkmcnt(15)")
        FS, FO = vP, vP + 2
        for qh in range(2):
            A(f"v_max_f32 {v(vP+4+qh)}, {v(MM+qh)}, {v(MM+4+qh)}")
        for qh in range(2):
            A(f"v_sub_f32 {v(FS+qh)}, {v(MM+qh)}, {v(vP+4+qh)}")
            A(f"v_sub_f32 {v(FO+qh)}, {v(MM+4+qh)}, {v(vP+4+qh)}")
        for qh in range(2):
            A(f"v_mul_f32 {v(FS+qh)}, {s(sC)}, {v(FS+qh)}")
            A(f"v_mul_f32 {v(FO+qh)}, {s(sC)}, {v(FO+qh)}")
        for qh in range(2):
            A(f"v_exp_f32 {v(FS+qh)}, {v(FS+qh)}")
            A(f"v_exp_f32 {v(FO+qh)}, {v(FO+qh)}")
        A("s_nop 0")
        for qh in range(2):
            A(f"v_mul_f32 {v(vP+4+qh)}, {v(MM+2+qh)}, {v(FS+qh)}")
            A(f"v_fma_f32 {v(vP+4+qh)}, {v(MM+6+qh)}, {v(FO+qh)}, {v(vP+4+qh)}")
        for qh in range(2): A(f"v_rcp_f32 {v(vP+4+qh)}, {v(vP+4+qh)}")
        A("s_nop 0")
        for qh in range(2):
            A(f"v_mul_f32 {v(FS+qh)}, {v(FS+qh)}, {v(vP+4+qh)}")
            A(f"v_mul_f32 {v(FO+qh)}, {v(FO+qh)}, {v(vP+4+qh)}")
        A("s_waitcnt lgkmcnt(0)")
        for dl, dt in enumerate(keep):
            A(f"s_mov_b32 {s(sT0)}, {dt*4096}")
            for qh in range(2):
                oth = vS + (dl*2+qh)*16
                own = (dt*2+qh)*16
                tmp = vVF + qh*16
                for r in range(16): A(f"v_accvgpr_read_b32 {v(tmp+r)}, {a(own+r)}")
                for r in range(16): A(f"v_mul_f32 {v(oth+r)}, {v(oth+r)}, {v(FO+qh)}")
                for r in range(16): A(f"v_fma_f32 {v(oth+r)}, {v(tmp+r)}, {v(FS+qh)}, {v(oth+r)}")
                for m in range(2):
                    dst = vQ + ((dl*2+qh)*2+m)*4
                    for j in range(4): A(f"v_cvt_pk_bf16_f32 {v(dst+j)}, {v(oth+8*m+2*j)}, {v(oth+8*m+2*j+1)}")
                    A(f"buffer_store_dwordx4 {v(dst,4)}, {v(vKa+2)}, {s(sO,4)}, {s(sT0)} offen offset:{qh*2048+m*512} {opt.get('oflag','')}")
        A("s_branch L_k1_fin")
    A("L_k1_fin:")
    ST(31)
    if fst:
        A(f"s_lshl_b32 {s(sT0)}, s2, 2"); A(f"s_add_u32 {s(sT0)}, {s(sT0)}, {s(sWv)}"); A(f"s_lshl_b32 {s(sT0)}, {s(sT0)}, 8")
        A(f"s_add_u32 {s(sT0)}, {s(sT0)}, 0x2200000")
        A(f"v_lshlrev_b32 v5, 2, {L}\nv_add_u32 v5, {s(sT0)}, v5")
        A("global_store_dword v5, v250, s[20:21]")
    if stamp:
        A("s_waitcnt vmcnt(0)")
        A("s_memrealtime s[76:77]")
        A("s_waitcnt lgkmcnt(0)")
        A(f"s_lshl_b32 {s(sT0)}, s2, 2"); A(f"s_add_u32 {s(sT0)}, {s(sT0)}, {s(sWv)}"); A(f"s_lshl_b32 {s(sT0)}, {s(sT0)}, 4")
        A(f"s_add_u32 {s(sT0)}, {s(sT0)}, 0x2000000")
        A(f"v_mov_b32 v8, s70\nv_mov_b32 v9, s72\nv_mov_b32 v10, s74\nv_mov_b32 v11, s76\nv_mov_b32 v5, {s(sT0)}")
        A(f"v_cmp_eq_u32 vcc, 0, {L}\ns_and_saveexec_b64 s[80:81], vcc")
        A("global_store_dwordx4 v5, v[8:11], s[20:21]")
    A("L_k1_done:")
    A("s_endpgm")
    return A.text(), kd(name, 512, 102, 256)
```

```python
from asmlib import *
from k1 import VQ
PART = 0x1000000

def gen_k2b(name, opt):
    A = Asm()
    wflag = opt.get("woflag", "nt"); oflag = opt.get("oldflag", ""); pflag = opt.get("pflag", "")
    stamp = opt.get("stamp", False)
    vL, vT = 1, 2
    vWd = 10
    vWa = 19
    vOl = 20
    vAF = 24
    vAcc = 48
    vOF = 120
    sW, sO, sP = 24, 28, 32
    sWv, sRot = 36, 37
    sT0, sT1, sT2, sT3 = 50, 51, 52, 53
    A(f".globl {name}\n.p2align 8\n.type {name},@function\n{name}:")
    A("s_cmp_ge_u32 s2, 256\ns_cbranch_scc1 L_k2b_done")
    if stamp: A("s_memrealtime s[70:71]")
    A("s_load_dwordx2 s[4:5], s[0:1], 32")
    A("s_load_dwordx2 s[6:7], s[0:1], 72")
    A("s_load_dwordx2 s[10:11], s[0:1], 96")
    A(f"v_lshrrev_b32 {v(vT)}, 6, v0\nv_and_b32 {v(vL)}, 63, v0\nv_readfirstlane_b32 {s(sWv)}, {v(vT)}")
    A("s_and_b32 s12, s2, 7\ns_lshr_b32 s13, s2, 3\ns_lshr_b32 s14, s13, 4\ns_bfe_u32 s15, s13, 0x20002\ns_and_b32 s16, s13, 3")
    A(f"s_add_u32 {s(sRot)}, s15, s16\ns_and_b32 {s(sRot)}, {s(sRot)}, 3")
    A("s_waitcnt lgkmcnt(0)")
    A("s_cmp_eq_u32 s14, 0\ns_cselect_b32 s4, s4, s6\ns_cselect_b32 s5, s5, s7")
    A(f"s_mul_i32 {s(sT0)}, s12, {512*1152}\ns_mul_i32 {s(sT1)}, s16, 288\ns_add_u32 {s(sT0)}, {s(sT0)}, {s(sT1)}")
    A(f"s_add_u32 {s(sW)}, s4, {s(sT0)}\ns_addc_u32 {s(sW+1)}, s5, 0\ns_and_b32 {s(sW+1)}, {s(sW+1)}, 0xffff")
    A(f"s_sub_u32 {s(sW+2)}, 4718592, {s(sT0)}\ns_mov_b32 {s(sW+3)}, 0x20000")
    A(f"s_lshl_b32 {s(sT0)}, s14, 22\ns_lshl_b32 {s(sT1)}, s15, 20\ns_add_u32 {s(sT0)}, {s(sT0)}, {s(sT1)}")
    A(f"s_lshr_b32 {s(sT1)}, {s(sWv)}, 1\ns_lshl_b32 {s(sT1)}, {s(sT1)}, 19\ns_add_u32 {s(sT0)}, {s(sT0)}, {s(sT1)}")
    A(f"s_lshl_b32 {s(sT1)}, s12, 16\ns_add_u32 {s(sT0)}, {s(sT0)}, {s(sT1)}")
    A(f"s_and_b32 {s(sT1)}, {s(sWv)}, 1\ns_lshl_b32 {s(sT1)}, {s(sT1)}, 11\ns_add_u32 {s(sT0)}, {s(sT0)}, {s(sT1)}")
    A(f"s_add_u32 {s(sO)}, s10, {s(sT0)}\ns_addc_u32 {s(sO+1)}, s11, 0\ns_and_b32 {s(sO+1)}, {s(sO+1)}, 0xffff")
    A(f"s_mov_b32 {s(sO+2)}, 0x10000\ns_mov_b32 {s(sO+3)}, 0x20000")
    A(f"s_lshl_b32 {s(sT0)}, s12, 1\ns_add_u32 {s(sT0)}, {s(sT0)}, s14\ns_lshl_b32 {s(sT0)}, {s(sT0)}, 2\ns_add_u32 {s(sT0)}, {s(sT0)}, s15")
    A(f"s_lshl_b32 {s(sT0)}, {s(sT0)}, 2\ns_add_u32 {s(sT0)}, {s(sT0)}, s16\ns_lshl_b32 {s(sT0)}, {s(sT0)}, 2\ns_add_u32 {s(sT0)}, {s(sT0)}, {s(sWv)}")
    A(f"s_mul_i32 {s(sT0)}, {s(sT0)}, 9216\ns_add_u32 {s(sT0)}, {s(sT0)}, {PART}")
    A(f"s_add_u32 {s(sP)}, s10, {s(sT0)}\ns_addc_u32 {s(sP+1)}, s11, 0\ns_and_b32 {s(sP+1)}, {s(sP+1)}, 0xffff")
    A(f"s_mov_b32 {s(sP+2)}, 9216\ns_mov_b32 {s(sP+3)}, 0x20000")
    L = v(vL); T0, T1, T2, T3 = (v(vT+i) for i in range(4))
    A(f"v_lshlrev_b32 {v(vOl)}, 4, {L}")
    for i in range(9):
        A(f"v_add_u32 {T0}, {i*64}, {L}")
        A(f"v_mul_u32_u24 {T1}, 3641, {T0}\nv_lshrrev_b32 {T1}, 16, {T1}")
        A(f"v_mul_u32_u24 {T2}, 18, {T1}\nv_sub_u32 {T2}, {T0}, {T2}")
        A(f"v_mul_u32_u24 {T1}, 1152, {T1}\nv_lshlrev_b32 {T2}, 4, {T2}\nv_add_u32 {v(vWd+i)}, {T1}, {T2}")
    Q = VQ(A)
    sG = 40
    for g in range(4):
        A(f"s_add_u32 {s(sG+g)}, {s(sRot)}, {g}\ns_and_b32 {s(sG+g)}, {s(sG+g)}, 3\ns_lshl_b32 {s(sG+g)}, {s(sG+g)}, 2")
    def issue_wo(g):
        A(f"s_add_u32 {s(sT0)}, {s(sG+g)}, {s(sWv)}\ns_mul_i32 {s(sT0)}, {s(sT0)}, 36864")
        A(f"s_mul_i32 {s(sT1)}, {s(sWv)}, 9216\ns_add_u32 {s(sT1)}, {s(sT1)}, {g*4*9216}")
        for i in range(9):
            A(f"s_add_u32 m0, {s(sT1)}, {i*1024}")
            A("s_nop 0")
            A(f"buffer_load_dwordx4 {v(vWd+i)}, {s(sW,4)}, {s(sT0)} offen {wflag} lds"); Q.issue(f"w{g}")
    def issue_o(g):
        for st in range(4):
            A(f"s_add_u32 {s(sT0)}, {s(sG+g)}, {st}\ns_lshl_b32 {s(sT0)}, {s(sT0)}, 12")
            for blk in range(2):
                A(f"buffer_load_dwordx4 {v(vOF+((g*4+st)*2+blk)*4,4)}, {v(vOl)}, {s(sO,4)}, {s(sT0)} offen offset:{blk*1024} {oflag}"); Q.issue(f"o{g}")
    issue_wo(0); issue_o(0)
    A(f"v_lshrrev_b32 {T0}, 5, {L}\nv_lshlrev_b32 {T0}, 4, {T0}\nv_bfe_u32 {T1}, {L}, 4, 1\nv_lshlrev_b32 {T1}, 2, {T1}\nv_add_u32 {T0}, {T0}, {T1}")
    A(f"v_bfe_u32 {T1}, {L}, 2, 2\nv_add_u32 {T0}, {T0}, {T1}\nv_mul_u32_u24 {T0}, 288, {T0}\nv_and_b32 {T1}, 3, {L}\nv_lshlrev_b32 {T1}, 3, {T1}\nv_add_u32 {v(vWa)}, {T0}, {T1}")
    A(f"v_add_u32 {v(vWa+2)}, 0x10000, {v(vWa)}\nv_add_u32 {v(vWa+3)}, 0x20000, {v(vWa)}")
    for i in range(72): A(f"v_mov_b32 {v(vAcc+i)}, 0")
    for g in range(1, 4): issue_wo(g); issue_o(g)
    def wa(off):
        if off < 0x10000: return v(vWa), off
        if off < 0x20000: return v(vWa+2), off - 0x10000
        return v(vWa+3), off - 0x20000
    NB = 5
    for g in range(4):
        Q.wait(f"w{g}", f"o{g}")
        A("s_barrier")
        seq = [(st, nt) for st in range(4) for nt in range(9)]
        def rd(idx):
            st, nt = seq[idx]; buf = vAF + (idx % NB) * 4
            for u in range(2):
                reg, imm = wa((g*4+st)*9216 + u*8*288 + nt*32)
                A(f"ds_read_b64_tr_b16 {v(buf+u*2,2)}, {reg} offset:{imm}")
        for i in range(NB - 1): rd(i)
        for idx, (st, nt) in enumerate(seq):
            left = min(len(seq) - 1 - idx, NB - 2)
            if idx + NB - 1 < len(seq):
                A(f"s_waitcnt lgkmcnt({2*(NB-2)})")
            else:
                A(f"s_waitcnt lgkmcnt({2*left})")
            buf = vAF + (idx % NB) * 4
            for blk in range(2):
                acc = v(vAcc + (nt*2+blk)*4, 4)
                A(f"v_mfma_f32_16x16x32_bf16 {acc}, {v(buf,4)}, {v(vOF+((g*4+st)*2+blk)*4,4)}, {acc}")
            if idx + NB - 1 < len(seq): rd(idx + NB - 1)
    A("s_nop 7")
    for nt in range(9):
        b = vAcc + nt*8
        for blk in range(2):
            A(f"v_cvt_pk_bf16_f32 {v(vOF+nt*4+blk*2)}, {v(b+blk*4)}, {v(b+blk*4+1)}")
            A(f"v_cvt_pk_bf16_f32 {v(vOF+nt*4+blk*2+1)}, {v(b+blk*4+2)}, {v(b+blk*4+3)}")
        A(f"s_mov_b32 {s(sT0)}, {nt*1024}")
        A(f"buffer_store_dwordx4 {v(vOF+nt*4,4)}, {v(vOl)}, {s(sP,4)}, {s(sT0)} offen {pflag}")
    if stamp:
        A("s_waitcnt vmcnt(0)\ns_memrealtime s[76:77]\ns_waitcnt lgkmcnt(0)")
        A(f"s_lshl_b32 {s(sT0)}, s2, 2\ns_add_u32 {s(sT0)}, {s(sT0)}, {s(sWv)}\ns_lshl_b32 {s(sT0)}, {s(sT0)}, 4\ns_add_u32 {s(sT0)}, {s(sT0)}, 0x2100000")
        A(f"v_mov_b32 v8, s70\nv_mov_b32 v9, s70\nv_mov_b32 v10, s76\nv_mov_b32 v11, s76\nv_mov_b32 v5, {s(sT0)}")
        A(f"v_cmp_eq_u32 vcc, 0, {L}\ns_and_saveexec_b64 s[78:79], vcc")
        A("global_store_dwordx4 v5, v[8:11], s[10:11]")
    A("L_k2b_done:\ns_endpgm")
    return A.text(), kd(name, 256, 102, 256)

def gen_k3(name, opt):
    A = Asm()
    stamp = opt.get("stamp", False)
    A(f".globl {name}\n.p2align 8\n.type {name},@function\n{name}:")
    A("s_cmp_ge_u32 s2, 288\ns_cbranch_scc1 L_k3_done")
    if stamp: A("s_memrealtime s[70:71]")
    A("s_load_dwordx2 s[8:9], s[0:1], 80\ns_load_dwordx2 s[10:11], s[0:1], 96")
    A("v_lshrrev_b32 v2, 6, v0\nv_and_b32 v1, 63, v0\nv_readfirstlane_b32 s36, v2")
    A("s_lshl_b32 s12, s2, 2\ns_add_u32 s12, s12, s36")
    A("s_mul_i32 s13, s12, 7282\ns_lshr_b32 s13, s13, 16")
    A("s_mul_i32 s14, s13, 9\ns_sub_u32 s14, s12, s14")
    A("s_and_b32 s15, s13, 3\ns_bfe_u32 s16, s13, 0x20002\ns_bfe_u32 s17, s13, 0x20004\ns_lshr_b32 s18, s13, 6")
    A("s_waitcnt lgkmcnt(0)")
    A(f"s_lshl_b32 s19, s12, 10\ns_add_u32 s19, s19, {PART}")
    A("s_add_u32 s24, s10, s19\ns_addc_u32 s25, s11, 0\ns_and_b32 s25, s25, 0xffff")
    A(f"s_mov_b32 s26, {7*1179648 + 1024}\ns_mov_b32 s27, 0x20000")
    A("v_lshlrev_b32 v3, 4, v1")
    for j in range(8):
        A(f"s_mov_b32 s20, {j*1179648}")
        A(f"buffer_load_dwordx4 v[{8+4*j}:{11+4*j}], v3, s[24:27], s20 offen {opt.get('pldflag','')}")
    A("s_mov_b32 s28, s8\ns_and_b32 s29, s9, 0xffff\ns_mov_b32 s30, 1179648\ns_mov_b32 s31, 0x20000")
    A("s_lshl_b32 s20, s17, 1\ns_lshr_b32 s21, s15, 1\ns_add_u32 s20, s20, s21\ns_lshl_b32 s20, s20, 6")
    A("s_and_b32 s21, s15, 1\ns_lshl_b32 s21, s21, 5\ns_add_u32 s20, s20, s21\ns_mul_i32 s20, s20, 2304")
    A("s_mul_i32 s21, s18, 1152\ns_add_u32 s20, s20, s21\ns_mul_i32 s21, s16, 288\ns_add_u32 s20, s20, s21\ns_lshl_b32 s21, s14, 5\ns_add_u32 s20, s20, s21")
    A("s_add_u32 s21, s20, %d" % (16*2304))
    A("v_and_b32 v4, 15, v1\nv_mul_u32_u24 v4, 2304, v4\nv_lshrrev_b32 v5, 4, v1\nv_lshlrev_b32 v5, 3, v5\nv_add_u32 v4, v4, v5")
    for r in range(8): A(f"v_mov_b32 v{48+r}, 0")
    for j in range(8):
        A(f"s_waitcnt vmcnt({7-j})")
        for d in range(4):
            src = 8 + 4*j + d
            A(f"v_lshlrev_b32 v{44}, 16, v{src}\nv_and_b32 v{45}, 0xffff0000, v{src}")
            A(f"v_add_f32 v{48+2*d}, v{48+2*d}, v44\nv_add_f32 v{48+2*d+1}, v{48+2*d+1}, v45")
    for d in range(4): A(f"v_cvt_pk_bf16_f32 v{56+d}, v{48+2*d}, v{48+2*d+1}")
    A("buffer_store_dwordx2 v[56:57], v4, s[28:31], s20 offen")
    A("buffer_store_dwordx2 v[58:59], v4, s[28:31], s21 offen")
    if stamp:
        A("s_waitcnt vmcnt(0)\ns_memrealtime s[76:77]\ns_waitcnt lgkmcnt(0)")
        A("s_lshl_b32 s50, s2, 2\ns_add_u32 s50, s50, s36\ns_lshl_b32 s50, s50, 4\ns_add_u32 s50, s50, 0x2180000")
        A("v_mov_b32 v8, s70\nv_mov_b32 v9, s70\nv_mov_b32 v10, s76\nv_mov_b32 v11, s76\nv_mov_b32 v5, s50")
        A("v_cmp_eq_u32 vcc, 0, v1\ns_and_saveexec_b64 s[78:79], vcc")
        A("global_store_dwordx4 v5, v[8:11], s[10:11]")
    A("L_k3_done:\ns_endpgm")
    return A.text(), kd(name, 64, 102, 64)
```

```python
import sys, json
from k1 import gen_k1
from k2 import gen_k2
from k2b import gen_k2b, gen_k3
KNAME = "concat_heads__gqa_block_cached__mha_block_cached__near_ridge"
HEADER = open("cdna_kernels/" + KNAME + ".s.ref").read().split("; Override launch")[0]
def build(opt):
    k1n, k2n = "attn_kernel", "oproj_kernel"
    t1, d1 = gen_k1(k1n, opt)
    if opt.get("beta", True):
        t2, d2 = gen_k2b(k2n, opt); t3, d3 = gen_k3("reduce_kernel", opt)
        out = HEADER
        out += f"; @launch kernel={k1n} grid=(256,1,1) block=(256,1,1) lds=163840\n"
        out += f"; @launch kernel={k2n} grid=(256,1,1) block=(256,1,1) lds=147456\n"
        out += f"; @launch kernel=reduce_kernel grid=(288,1,1) block=(256,1,1) lds=0\n"
        out += '.amdgcn_target "amdgcn-amd-amdhsa--gfx950"\n.text\n' + t1 + t2 + t3
        out += '.section .rodata,"a"\n.p2align 6\n' + d1 + ".p2align 6\n" + d2 + ".p2align 6\n" + d3
        return out
    t2, d2 = gen_k2(k2n, opt)
    out = HEADER
    out += f"; @launch kernel={k1n} grid=(256,1,1) block=(256,1,1) lds=163840\n"
    if not opt.get("k1only"):
        out += f"; @launch kernel={k2n} grid=(256,1,1) block=(256,1,1) lds=131072\n"
    out += '.amdgcn_target "amdgcn-amd-amdhsa--gfx950"\n.text\n' + t1 + t2
    out += '.section .rodata,"a"\n.p2align 6\n' + d1 + ".p2align 6\n" + d2
    return out
if __name__ == "__main__":
    path = sys.argv[1]
    opt = json.loads(sys.argv[2]) if len(sys.argv) > 2 else {}
    open(path, "w").write(build(opt))
```

```python
from asmlib import *
import math

LOG2E = 1.4426950408889634
QSCALE = LOG2E / math.sqrt(128.0)
def f2u(x):
    import struct
    return struct.unpack("<I", struct.pack("<f", x))[0]

RING = 32768
KA, VA, KB, VB = 0, 8192, 16384, 24576
EXTRA = 131072
vTID, vLANE = 0, 1
vDMA = 2
vKa = 6
vVa = 14
vM = 22
vMT = 24
vL = 26
vT = 30
vNM = 38
vNon = 216
vQ = 40
vS = 104
vKF = 136
vVF = 168
vP = 200
NV = 216
vQacc = 104
vWF2 = 40
vWdma = 200
vXdma = 204
vWa = 205
vXa = 207
sK, sV, sX, sW, sO = 24, 28, 32, 36, 40
sWv, sHH, sKH, sRing, sKoff, sCnt = 44, 45, 46, 47, 48, 49
sT0, sT1, sT2, sT3 = 50, 51, 52, 53
sRot, sB, sH0, sType = 54, 55, 56, 57
sTile = 58
sXw, sXl = 59, 60
sC = 61
sNonce = 62
sM0, sM1 = 64, 66
sRet = 68

class VQ:
    def __init__(self, A): self.q = []; self.A = A
    def issue(self, tag): self.q.append(tag)
    def wait(self, *tags):
        idx = [i for i, t in enumerate(self.q) if t in tags]
        if not idx: return
        last = max(idx)
        n = len(self.q) - 1 - last
        assert n <= 63, n
        self.A(f"s_waitcnt vmcnt({n})")
        self.q = self.q[last + 1:]
    def wait_all(self):
        self.A("s_waitcnt vmcnt(0)"); self.q = []

def gen_k1(name, opt):
    A = Asm()
    fine = opt.get("fine", True)
    kvflag = opt.get("kvflag", "nt")
    wflag = opt.get("wflag", "nt"); xflag = opt.get("xflag", "")
    k0_k = opt.get("k0_k", 23); v0_k = opt.get("v0_k", 36)
    assert k0_k >= 23 and v0_k >= 27
    THR = opt.get("thr", 8.0)
    dbg = opt.get("dbg", None)
    stamp = opt.get("stamp", False)
    fst = opt.get("fstamp", False)
    def ST(i):
        if fst and (fst is True or i in fst):
            A("s_memrealtime s[80:81]\ns_memtime s[82:83]\ns_waitcnt lgkmcnt(0)"); A(f"v_writelane_b32 v250, s80, {i}"); A(f"v_writelane_b32 v250, s82, {i+32}")
    A(f".globl {name}\n.p2align 8\n.type {name},@function\n{name}:")
    A(f"s_cmp_ge_u32 s2, 256\ns_cbranch_scc1 L_k1_done")
    if stamp: A("s_memrealtime s[70:71]")
    A("s_load_dwordx8 s[4:11], s[0:1], 0")
    A("s_load_dwordx8 s[12:19], s[0:1], 40")
    A("s_load_dwordx2 s[20:21], s[0:1], 96")
    A("s_load_dwordx2 s[22:23], s[0:1], 88")
    A(f"v_lshrrev_b32 {v(vT)}, 6, v0")
    A(f"v_and_b32 {v(vLANE)}, 63, v0")
    A(f"v_readfirstlane_b32 {s(sWv)}, {v(vT)}")
    A(f"s_and_b32 {s(sT0)}, s2, 7")
    A(f"s_lshr_b32 {s(sT1)}, s2, 3")
    A(f"s_and_b32 {s(sType)}, {s(sT1)}, 1")
    A(f"s_lshr_b32 {s(sT1)}, {s(sT1)}, 1")
    A(f"s_and_b32 {s(sT2)}, {s(sT1)}, 1")
    A(f"s_lshr_b32 {s(sB)}, {s(sT1)}, 1")
    A(f"s_lshl_b32 {s(sH0)}, {s(sT0)}, 2")
    A(f"s_lshl_b32 {s(sT3)}, {s(sT2)}, 1")
    A(f"s_add_u32 {s(sH0)}, {s(sH0)}, {s(sT3)}")
    A(f"s_lshl_b32 {s(sT3)}, {s(sT2)}, 2")
    A(f"s_add_u32 {s(sRot)}, {s(sB)}, {s(sT3)}")
    A(f"s_and_b32 {s(sRot)}, {s(sRot)}, 7")
    A(f"s_and_b32 {s(sHH)}, {s(sWv)}, 1")
    A(f"s_lshr_b32 {s(sKH)}, {s(sWv)}, 1")
    A(f"s_lshl_b32 {s(sRing)}, {s(sWv)}, 15")
    A("s_waitcnt lgkmcnt(0)")
    A(f"s_cmp_eq_u32 {s(sType)}, 0")
    for i in range(8): A(f"s_cselect_b32 {s(4+i)}, {s(4+i)}, {s(12+i)}")
    A(f"s_add_u32 {s(sT0)}, {s(sH0)}, {s(sHH)}")
    A(f"s_lshl_b32 {s(sT1)}, {s(sB)}, 5")
    A(f"s_add_u32 {s(sT1)}, {s(sT1)}, {s(sT0)}")
    A(f"s_lshr_b32 {s(sT2)}, {s(sH0)}, 1")
    A(f"s_lshl_b32 {s(sT3)}, {s(sB)}, 4")
    A(f"s_add_u32 {s(sT2)}, {s(sT2)}, {s(sT3)}")
    A(f"s_cmp_eq_u32 {s(sType)}, 0")
    A(f"s_cselect_b32 {s(sT2)}, {s(sT2)}, {s(sT1)}")
    A(f"s_lshl_b32 {s(sT2)}, {s(sT2)}, 18")
    for srd, p in ((sK, 6), (sV, 8)):
        A(f"s_add_u32 {s(srd)}, {s(p)}, {s(sT2)}")
        A(f"s_addc_u32 {s(srd+1)}, {s(p+1)}, 0")
        A(f"s_and_b32 {s(srd+1)}, {s(srd+1)}, 0xffff")
        A(f"s_mov_b32 {s(srd+2)}, 0x40000")
        A(f"s_mov_b32 {s(srd+3)}, 0x20000")
    fused = opt.get("fused", False)
    if fused:
        A(f"s_and_b32 {s(sT1)}, s2, 7\ns_lshl_b32 {s(sT1)}, {s(sT1)}, 1\ns_add_u32 {s(sT1)}, {s(sT1)}, {s(sType)}")
        A(f"s_lshl_b32 {s(sT1)}, {s(sT1)}, 3\ns_add_u32 {s(sT1)}, {s(sT1)}, {s(sB)}\ns_lshl_b32 {s(sT1)}, {s(sT1)}, 2")
        A(f"s_and_b32 {s(sT2)}, {s(sT0)}, 3\ns_add_u32 {s(sT1)}, {s(sT1)}, {s(sT2)}")
    else:
        A(f"s_lshl_b32 {s(sT2)}, {s(sType)}, 8")
        A(f"s_add_u32 {s(sT1)}, {s(sT1)}, {s(sT2)}")
    A(f"s_lshl_b32 {s(sT1)}, {s(sT1)}, 14")
    A(f"s_add_u32 {s(sO)}, s20, {s(sT1)}")
    A(f"s_addc_u32 {s(sO+1)}, s21, 0")
    A(f"s_and_b32 {s(sO+1)}, {s(sO+1)}, 0xffff")
    A(f"s_mov_b32 {s(sO+2)}, 16384")
    A(f"s_mov_b32 {s(sO+3)}, 0x20000")
    A(f"s_mul_i32 {s(sT1)}, {s(sB)}, 73728")
    A(f"s_add_u32 {s(sX)}, s4, {s(sT1)}")
    A(f"s_addc_u32 {s(sX+1)}, s5, 0")
    A(f"s_and_b32 {s(sX+1)}, {s(sX+1)}, 0xffff")
    A(f"s_mov_b32 {s(sX+2)}, 73728")
    A(f"s_mov_b32 {s(sX+3)}, 0x20000")
    A(f"s_lshl_b32 {s(sT1)}, {s(sT0)}, 8")
    A(f"s_lshl_b32 {s(sT2)}, {s(sKH)}, 7")
    A(f"s_add_u32 {s(sT1)}, {s(sT1)}, {s(sT2)}")
    A(f"s_add_u32 {s(sW)}, s10, {s(sT1)}")
    A(f"s_addc_u32 {s(sW+1)}, s11, 0")
    A(f"s_and_b32 {s(sW+1)}, {s(sW+1)}, 0xffff")
    A(f"s_sub_u32 {s(sW+2)}, 4718592, {s(sT1)}")
    A(f"s_mov_b32 {s(sW+3)}, 0x20000")
    L = v(vLANE); T0, T1, T2, T3 = (v(vT + i) for i in range(4))
    A(f"v_lshrrev_b32 {T0}, 4, {L}")
    A(f"s_lshl_b32 {s(sT1)}, {s(sHH)}, 2")
    A(f"v_or_b32 {T0}, {s(sT1)}, {T0}")
    A(f"v_and_b32 {T1}, 7, {L}")
    A(f"v_xor_b32 {T0}, {T0}, {T1}")
    A(f"v_lshlrev_b32 {T0}, 4, {T0}")
    A(f"v_lshrrev_b32 {T1}, 3, {L}")
    A(f"v_mul_u32_u24 {T2}, 1152, {T1}")
    A(f"v_add_u32 {v(vXdma)}, {T0}, {T2}")
    A(f"v_lshrrev_b32 {T0}, 4, {L}")
    A(f"v_and_b32 {T0}, 1, {T0}")
    A(f"v_lshlrev_b32 {T0}, 2, {T0}")
    A(f"v_and_b32 {T2}, 7, {L}")
    A(f"v_xor_b32 {T0}, {T0}, {T2}")
    A(f"v_lshlrev_b32 {T0}, 4, {T0}")
    A(f"v_lshlrev_b32 {T1}, 13, {T1}")
    A(f"v_add_u32 {v(vWdma)}, {T0}, {T1}")
    for n in range(1, 4): A(f"v_add_u32 {v(vWdma+n)}, {n*64512}, {v(vWdma)}")
    Q = VQ(A)
    if fused:
        A(f"s_or_b32 {s(sT0)}, s2, {s(sWv)}\ns_cmp_eq_u32 {s(sT0)}, 0\ns_cbranch_scc0 L_k1_nonce_done")
        A(f"s_memrealtime s[62:63]\ns_waitcnt lgkmcnt(0)\ns_or_b32 s62, s62, 1")
        A(f"v_mov_b32 {T0}, s62\nv_mov_b32 {T1}, 0")
        A(f"s_mov_b64 s[62:63], exec\ns_mov_b64 exec, 1")
        A(f"global_store_dword {T1}, {T0}, s[22:23] sc1")
        A("s_mov_b64 exec, s[62:63]")
        A("L_k1_nonce_done:")
    if fst: A("v_mov_b32 v250, 0")
    ST(0)
    XSLOT = [EXTRA + (i & 3)*8192 for i in range(9)]
    def tile_of(t, dst):
        A(f"s_add_u32 {s(dst)}, {s(sRot)}, {t}")
        A(f"s_cmp_ge_u32 {s(dst)}, 9")
        A(f"s_cselect_b32 {s(sT3)}, 9, 0")
        A(f"s_sub_u32 {s(dst)}, {s(dst)}, {s(sT3)}")
    def issue_x(t):
        tile_of(t, sT0)
        A(f"s_lshl_b32 {s(sT0)}, {s(sT0)}, 7")
        A(f"s_add_u32 {s(sT0)}, {s(sT0)}, {s(sXw)}")
        A(f"s_add_u32 m0, {s(sXl)}, {XSLOT[t]}")
        A(f"s_add_u32 {s(sT2)}, {s(sT0)}, {4*9216}")
        A(f"buffer_load_dwordx4 {v(vXdma)}, {s(sX,4)}, {s(sT0)} offen {xflag} lds"); Q.issue(f"x{t}")
        A(f"s_add_u32 m0, {s(sXl)}, {XSLOT[t] + 4096}")
        A("s_nop 0")
        A(f"buffer_load_dwordx4 {v(vXdma)}, {s(sX,4)}, {s(sT2)} offen {xflag} lds"); Q.issue(f"x{t}")
    WPOS = {0: KB, 1: KB+4096, 2: VB, 3: VB+4096, 4: KA, 5: KA+4096, 6: VA, 7: VA+4096, 8: KB, 9: KB+4096,
            10: KA, 11: KA+4096, 12: VA, 13: VA+4096, 14: VB, 15: VB+4096, 16: KB, 17: KB+4096}
    WISSUE = {4: 0, 5: 1, 6: 2, 7: 3, 8: 4, 9: 5, 14: 6, 15: 7, 10: 9, 11: 11, 12: 13, 13: 15, 16: 17, 17: 19}
    def issue_w(hs):
        tile_of(hs >> 1, sT0)
        A(f"s_lshl_b32 {s(sT0)}, {s(sT0)}, 19")
        A(f"s_add_u32 m0, {s(sRing)}, {WPOS[hs]}")
        if hs & 1: A(f"s_add_u32 {s(sT0)}, {s(sT0)}, {32*8192}")
        else: A("s_nop 0")
        for n in range(4):
            A(f"buffer_load_dwordx4 {v(vWdma+n)}, {s(sW,4)}, {s(sT0)} offen offset:{n*1024} {wflag} lds"); Q.issue(f"w{hs}")
    def issue_kv(srd, slot, tag, q=None):
        hs = 8192 if fine else 4096
        for half in range(2):
            A(f"s_add_u32 m0, {s(sRing)}, {slot + half*4096}")
            A(f"s_add_u32 {s(sT0)}, {s(sKoff)}, {half*hs}")
            for n in range(4):
                A(f"buffer_load_dwordx4 {v(vDMA+n)}, {s(srd,4)}, {s(sT0)} offen offset:{n*1024} {kvflag} lds")
                if q is not None: q.issue(tag)
    A(f"s_mov_b32 {s(sC)}, {f2u(QSCALE):#x}")
    A(f"s_mul_i32 {s(sXw)}, {s(sWv)}, 9216")
    A(f"s_lshl_b32 {s(sXl)}, {s(sWv)}, 10")
    if opt.get("warm", True):
        A(f"s_lshr_b32 {s(sT0)}, s2, 4\ns_lshl_b32 {s(sT0)}, {s(sT0)}, 2\ns_add_u32 {s(sT0)}, {s(sT0)}, {s(sWv)}")
        A(f"s_mov_b32 s12, s10\ns_and_b32 s13, s11, 0xffff\ns_mov_b32 s14, 4718592\ns_mov_b32 s15, 0x20000")
        A(f"s_mov_b32 s16, s4\ns_and_b32 s17, s5, 0xffff\ns_mov_b32 s18, 589824\ns_mov_b32 s19, 0x20000")
        A(f"v_lshlrev_b32 {T3}, 4, {L}")
        A(f"s_mul_i32 {s(sT1)}, {s(sT0)}, {9*8192}\ns_and_b32 {s(sT2)}, s2, 7\ns_lshl_b32 {s(sT2)}, {s(sT2)}, 10\ns_add_u32 {s(sT1)}, {s(sT1)}, {s(sT2)}")
        A(f"s_mul_i32 {s(sT0)}, {s(sT0)}, 9216")
        for i in range(9):
            A(f"buffer_load_dwordx4 v[104:107], {T3}, s[12:15], {s(sT1)} offen {wflag}"); Q.issue("warm")
            A(f"buffer_load_dwordx4 v[104:107], {T3}, s[16:19], {s(sT0)} offen {xflag}"); Q.issue("warm")
            if i < 8: A(f"s_add_u32 {s(sT1)}, {s(sT1)}, 8192\ns_add_u32 {s(sT0)}, {s(sT0)}, 1024")
    issue_x(0); issue_w(0); issue_w(1)
    ST(20)
    A(f"v_lshrrev_b32 {T0}, 4, {L}")
    A(f"v_lshlrev_b32 {T1}, 2, {T0}")
    A(f"v_and_b32 {T2}, 15, {L}")
    A(f"v_xor_b32 {T1}, {T1}, {T2}")
    A(f"v_lshlrev_b32 {T0}, 8, {T0}")
    for n in range(4):
        A(f"v_xor_b32 {T2}, {n}, {T1}")
        A(f"v_lshlrev_b32 {T2}, 4, {T2}")
        A(f"v_add_u32 {v(vDMA+n)}, {T0}, {T2}")
        if fine and n: A(f"v_add_u32 {v(vDMA+n)}, {n*1024}, {v(vDMA+n)}")
    A(f"s_lshl_b32 {s(sKoff)}, {s(sKH)}, {10 if fine else 13}")
    A(f"v_and_b32 {T0}, 31, {L}")
    A(f"v_and_b32 {T1}, 3, {T0}")
    A(f"v_lshlrev_b32 {T1}, 2, {T1}")
    A(f"v_bfe_u32 {T2}, {T0}, 2, 2")
    A(f"v_or_b32 {T1}, {T1}, {T2}")
    A(f"v_lshrrev_b32 {T2}, 5, {L}")
    A(f"v_xor_b32 {T1}, {T1}, {T2}")
    A(f"v_lshlrev_b32 {T1}, 4, {T1}")
    A(f"v_lshlrev_b32 {T0}, 8, {T0}")
    A(f"v_add_u32 {T0}, {T0}, {T1}")
    A(f"v_add_u32 {v(vKa)}, {s(sRing)}, {T0}")
    for kk in range(1, 8): A(f"v_xor_b32 {v(vKa+kk)}, {kk<<5}, {v(vKa)}")
    A(f"v_bfe_u32 {T0}, {L}, 4, 1")
    A(f"v_lshlrev_b32 {T0}, 1, {T0}")
    A(f"v_bfe_u32 {T1}, {L}, 1, 1")
    A(f"v_or_b32 {T0}, {T0}, {T1}")
    A(f"v_bfe_u32 {T1}, {L}, 2, 2")
    A(f"v_lshlrev_b32 {T2}, 2, {T1}")
    A(f"v_xor_b32 {T0}, {T0}, {T2}")
    A(f"v_lshrrev_b32 {T2}, 5, {L}")
    A(f"v_xor_b32 {T0}, {T0}, {T2}")
    A(f"v_lshlrev_b32 {T0}, 4, {T0}")
    A(f"v_lshlrev_b32 {T2}, 2, {T2}")
    A(f"v_add_u32 {T1}, {T1}, {T2}")
    A(f"v_lshlrev_b32 {T1}, 8, {T1}")
    A(f"v_add_u32 {T0}, {T0}, {T1}")
    A(f"v_and_b32 {T1}, 1, {L}")
    A(f"v_lshlrev_b32 {T1}, 3, {T1}")
    A(f"v_add_u32 {T0}, {T0}, {T1}")
    A(f"v_add_u32 {T0}, {s(sRing)}, {T0}")
    for dt in range(4):
        for u in range(2):
            A(f"v_xor_b32 {v(vVa+dt*2+u)}, {(dt<<6)|(u<<5)}, {T0}")
            if u: A(f"v_add_u32 {v(vVa+dt*2+u)}, 2048, {v(vVa+dt*2+u)}")
    A(f"v_bfe_u32 {T0}, {L}, 4, 1")
    A(f"v_lshlrev_b32 {T0}, 1, {T0}")
    A(f"v_and_b32 {T1}, 1, {L}")
    A(f"v_or_b32 {T0}, {T0}, {T1}")
    A(f"v_bfe_u32 {T1}, {L}, 3, 1")
    A(f"v_lshlrev_b32 {T1}, 2, {T1}")
    A(f"v_xor_b32 {T0}, {T0}, {T1}")
    A(f"v_lshlrev_b32 {T0}, 4, {T0}")
    A(f"v_bfe_u32 {T1}, {L}, 2, 2")
    A(f"v_lshrrev_b32 {T2}, 5, {L}")
    A(f"v_lshlrev_b32 {T2}, 3, {T2}")
    A(f"v_add_u32 {T1}, {T1}, {T2}")
    A(f"v_lshlrev_b32 {T1}, 7, {T1}")
    A(f"v_add_u32 {T0}, {T0}, {T1}")
    A(f"v_bfe_u32 {T1}, {L}, 1, 1")
    A(f"v_lshlrev_b32 {T1}, 3, {T1}")
    A(f"v_add_u32 {T0}, {T0}, {T1}")
    A(f"v_add_u32 {T0}, {s(sRing)}, {T0}")
    A(f"v_mov_b32 {v(vWa)}, {T0}")
    A(f"v_xor_b32 {v(vWa+1)}, 64, {v(vWa)}")
    A(f"v_and_b32 {T0}, 31, {L}")
    A(f"v_bfe_u32 {T1}, {T0}, 1, 3")
    A(f"v_lshrrev_b32 {T2}, 5, {L}")
    A(f"v_xor_b32 {T1}, {T1}, {T2}")
    A(f"v_lshlrev_b32 {T1}, 4, {T1}")
    A(f"v_lshlrev_b32 {T0}, 7, {T0}")
    A(f"v_add_u32 {T0}, {T0}, {T1}")
    A(f"v_mov_b32 {v(vXa)}, {T0}")
    for kk in range(1, 4): A(f"v_xor_b32 {v(vXa+kk)}, {kk<<5}, {v(vXa)}")
    ST(23)
    for i in range(128): A(f"v_accvgpr_write_b32 {a(i)}, 0")
    for qh in range(2):
        A(f"v_mov_b32 {v(vL+2*qh)}, 0"); A(f"v_mov_b32 {v(vL+2*qh+1)}, 0")
    issue_x(1); issue_w(2); issue_w(3)
    if k0_k == -1: issue_kv(sK, KA, "K0", Q)
    if v0_k == -1: issue_kv(sV, VA, "V0", Q)
    ST(24)
    vXc = vXa + 4
    def rbuf(k): return vWF2 + (k % 3) * 16
    def read_list(k):
        hs, kl, t, kk = k >> 1, k & 1, k >> 2, k & 3
        buf = rbuf(k); out = []
        for dt in range(2):
            for u in range(2):
                out.append(f"ds_read_b64_tr_b16 {v(buf+dt*4+u*2,2)}, {v(vWa+dt)} offset:{WPOS[hs] + kl*2048 + u*512}")
        for qh in range(2):
            out.append(f"ds_read_b128 {v(buf+8+qh*4,4)}, {v(vXc+kk)} offset:{qh*4096}")
        return out
    def pre_reads(k):
        hs, t, kk = k >> 1, k >> 2, k & 3
        if kk == 0:
            Q.wait(f"x{t}", f"w{hs}")
            if not (opt.get("exp_nobar") and t > 0): A("s_barrier")
            for j in range(4): A(f"v_add_u32 {v(vXc+j)}, {XSLOT[t]}, {v(vXa+j)}")
        elif k & 1 == 0:
            Q.wait(f"w{hs}")
    pre_reads(0)
    ST(1)
    for i in read_list(0): A(i)
    for i in read_list(1): A(i)
    for k in range(36):
        hs = k >> 1
        rl = []
        if k + 2 < 36:
            pre_reads(k + 2); rl = read_list(k + 2)
        A(f"s_waitcnt lgkmcnt({6 if k + 1 < 36 else 0})")
        buf = rbuf(k); n = 0
        for dt in range(2):
            for qh in range(2):
                acc = v(vQacc + (dt*2+qh)*16, 16)
                c = "0" if k == 0 else acc
                A(f"v_mfma_f32_32x32x16_bf16 {acc}, {v(buf+dt*4,4)}, {v(buf+8+qh*4,4)}, {c}")
                if opt.get("exp_noilv"):
                    if n == 3:
                        for i in rl: A(i)
                else:
                    for i in rl[2*n:2*n+2]: A(i)
                n += 1
        if k == 0: issue_x(2)
        if k == 2: issue_x(3)
        for n_, kk_ in WISSUE.items():
            if kk_ == k: issue_w(n_)
        if (k + 2) & 3 == 0 and k + 2 < 36 and ((k + 2) >> 2) >= 2 and ((k + 2) >> 2) + 2 < 9: issue_x(((k + 2) >> 2) + 2)
        if k == k0_k: issue_kv(sK, KA, "K0", Q)
        if k == v0_k: issue_kv(sV, VA, "V0", Q)
        if k & 3 == 3: ST(2 + (k >> 2))
    A("s_nop 7\ns_nop 5")
    ST(25)
    A("s_barrier")
    ST(26)
    A(f"s_lshl_b32 {s(sT1)}, {s(sWv)}, 13")
    A(f"v_lshlrev_b32 {T0}, 4, {L}")
    A(f"v_add_u32 {T1}, {s(sT1)}, {T0}")
    A(f"v_add_u32 {T1}, {EXTRA}, {T1}")
    A(f"s_lshl_b32 {s(sT1)}, {s(sHH)}, 13")
    A(f"v_add_u32 {T2}, {s(sT1)}, {T0}")
    A(f"v_add_u32 {T2}, {EXTRA}, {T2}")
    for dt in range(2):
        for qh in range(2):
            acc = vQacc + (dt*2+qh)*16
            for m in range(2):
                dst = vVF + ((dt*2+m)*2+qh)*4
                for j in range(4): A(f"v_cvt_pk_bf16_f32 {v(dst+j)}, {v(acc+8*m+2*j)}, {v(acc+8*m+2*j+1)}")
    if v0_k == 36: issue_kv(sV, VA, "V0", Q)
    ST(27)
    for f in range(8): A(f"ds_write_b128 {T1}, {v(vVF+f*4,4)} offset:{f*1024}")
    A("s_waitcnt lgkmcnt(0)")
    A("s_barrier")
    ST(28)
    for half in range(2):
        for kl in range(4):
            for qh in range(2):
                kk = half*4 + kl
                A(f"ds_read_b128 {v(vQ+qh*32+kk*4,4)}, {T2} offset:{half*16384 + (kl*2+qh)*1024}")
        A("s_waitcnt lgkmcnt(0)")
    if dbg == "q":
        A(f"s_lshl_b32 {s(sT0)}, s2, 2"); A(f"s_add_u32 {s(sT0)}, {s(sT0)}, {s(sWv)}"); A(f"s_lshl_b32 {s(sT0)}, {s(sT0)}, 14")
        A(f"s_add_u32 {s(sT0)}, {s(sT0)}, 0x1000000")
        A(f"v_lshlrev_b32 {T0}, 4, {L}"); A(f"v_add_u32 {T0}, {s(sT0)}, {T0}")
        for f in range(16):
            A(f"global_store_dwordx4 {T0}, {v(vQ+f*4,4)}, s[20:21]"); A(f"v_add_u32 {T0}, 1024, {T0}")
        A("s_waitcnt vmcnt(0)")
    ST(19)
    if stamp: A("s_memrealtime s[72:73]")
    A(f"s_add_u32 {s(sKoff)}, {s(sKoff)}, 16384")
    def tile(par, kind, uid):
        ks, vs = (KA, VA) if par == 0 else (KB, VB)
        kw = {"first": 8, "mid": 24, "pen": 24, "last": 8 + (1 if fused else 0)}[kind]
        vw = {"first": 16, "mid": 24, "pen": 16, "last": 0}[kind]
        A(f"s_waitcnt vmcnt({kw})")
        for kk in range(8): A(f"ds_read_b128 {v(vKF+kk*4,4)}, {v(vKa+kk)} offset:{ks}")
        for kk in range(8):
            A(f"s_waitcnt lgkmcnt({7-kk})")
            for qh in range(2):
                acc = v(vS+16*qh, 16)
                A(f"v_mfma_f32_32x32x16_bf16 {acc}, {v(vKF+kk*4,4)}, {v(vQ+qh*32+kk*4,4)}, {'0' if kk == 0 else acc}")
        if kind == "first": issue_kv(sK, KB, None); A("s_nop 1")
        elif kind == "mid": issue_kv(sK, ks, None); A("s_nop 1")
        else: A("s_nop 7\ns_nop 5")
        for qh in range(2):
            b = vS + 16*qh; t = v(vT+qh)
            A(f"v_max3_f32 {t}, {v(b)}, {v(b+1)}, {v(b+2)}")
            for i in range(3, 15, 2): A(f"v_max3_f32 {t}, {t}, {v(b+i)}, {v(b+i+1)}")
            A(f"v_max_f32 {t}, {t}, {v(b+15)}")
        if kind == "first":
            for qh in range(2): A(f"v_mov_b32 {v(vT+2+qh)}, {v(vT+qh)}")
            A("s_nop 1")
            for qh in range(2): A(f"v_permlane32_swap_b32 {v(vT+qh)}, {v(vT+2+qh)}")
            A("s_nop 1")
            for qh in range(2): A(f"v_max_f32 {v(vM+qh)}, {v(vT+qh)}, {v(vT+2+qh)}")
            for qh in range(2):
                A(f"v_add_f32 {v(vMT+qh)}, {f2u(THR/QSCALE):#x}, {v(vM+qh)}")
                A(f"v_mul_f32 {v(vNM+qh)}, {f2u(-QSCALE):#x}, {v(vM+qh)}")
        else:
            A(f"v_cmp_gt_f32 vcc, {v(vT)}, {v(vMT)}")
            A(f"v_cmp_gt_f32 {s(sM0,2)}, {v(vT+1)}, {v(vMT+1)}")
            A(f"s_or_b64 {s(sM0,2)}, {s(sM0,2)}, vcc")
            A(f"s_cbranch_scc0 L_k1_back{uid}")
            A(f"s_call_b64 {s(sRet,2)}, L_k1_rare")
            A(f"L_k1_back{uid}:")
        for qh in range(2):
            b = vS + 16*qh
            for i in range(16): A(f"v_fma_f32 {v(b+i)}, {v(b+i)}, {s(sC)}, {v(vNM+qh)}")
            for i in range(16): A(f"v_exp_f32 {v(b+i)}, {v(b+i)}")
        for qh in range(2):
            b = vS + 16*qh
            for i in range(16): A(f"v_add_f32 {v(vL+2*qh+(i&1))}, {v(vL+2*qh+(i&1))}, {v(b+i)}")
            for m in range(2):
                for j in range(4): A(f"v_cvt_pk_bf16_f32 {v(vP+qh*8+m*4+j)}, {v(b+8*m+2*j)}, {v(b+8*m+2*j+1)}")
        if kind == "first":
            issue_kv(sV, VB, None)
            A(f"s_add_u32 {s(sKoff)}, {s(sKoff)}, 16384")
        if fused and kind == "pen":
            A(f"v_mov_b32 {v(vNon+1)}, 0")
            A(f"global_load_dword {v(vNon)}, {v(vNon+1)}, s[22:23] sc1")
        if fused and kind in ("pen", "last"): vw += 1
        A(f"s_waitcnt vmcnt({vw})")
        for dt in range(4):
            for m in range(2):
                for u in range(2):
                    A(f"ds_read_b64_tr_b16 {v(vVF+(dt*2+m)*4+u*2,2)}, {v(vVa+dt*2+u)} offset:{vs + m*4096}")
        for dt in range(4):
            for m in range(2):
                A(f"s_waitcnt lgkmcnt({14-(dt*2+m)*2})")
                for qh in range(2):
                    acc = a((dt*2+qh)*16, 16)
                    A(f"v_mfma_f32_32x32x16_bf16 {acc}, {v(vVF+(dt*2+m)*4,4)}, {v(vP+qh*8+m*4,4)}, {acc}")
        if kind == "first":
            issue_kv(sK, KA, None); issue_kv(sV, VA, None)
            A(f"s_add_u32 {s(sKoff)}, {s(sKoff)}, 16384")
        elif kind == "mid":
            issue_kv(sV, vs, None)
            A(f"s_add_u32 {s(sKoff)}, {s(sKoff)}, 16384")
    tile(0, "first", 0)
    ST(29)
    A(f"s_mov_b32 {s(sTile)}, 1")
    A("L_k1_loop:")
    tile(1, "mid", 1)
    A(f"s_cmp_eq_u32 {s(sTile)}, 13")
    A("s_cbranch_scc1 L_k1_tail")
    tile(0, "mid", 2)
    A(f"s_add_u32 {s(sTile)}, {s(sTile)}, 2")
    A("s_branch L_k1_loop")
    A("L_k1_tail:")
    tile(0, "pen", 3)
    tile(1, "last", 4)
    A("s_branch L_k1_epi")
    A("L_k1_rare:")
    for qh in range(2): A(f"v_mov_b32 {v(vT+2+qh)}, {v(vT+qh)}")
    A("s_nop 1")
    for qh in range(2): A(f"v_permlane32_swap_b32 {v(vT+qh)}, {v(vT+2+qh)}")
    A("s_nop 1")
    for qh in range(2):
        A(f"v_max3_f32 {v(vT+qh)}, {v(vT+qh)}, {v(vT+2+qh)}, {v(vM+qh)}")
    for qh in range(2):
        A(f"v_sub_f32 {v(vT+2+qh)}, {v(vM+qh)}, {v(vT+qh)}")
    for qh in range(2): A(f"v_mul_f32 {v(vT+2+qh)}, {s(sC)}, {v(vT+2+qh)}")
    for qh in range(2): A(f"v_exp_f32 {v(vT+2+qh)}, {v(vT+2+qh)}")
    for qh in range(2):
        A(f"v_mov_b32 {v(vM+qh)}, {v(vT+qh)}")
        A(f"v_add_f32 {v(vMT+qh)}, {f2u(THR/QSCALE):#x}, {v(vT+qh)}")
        A(f"v_mul_f32 {v(vNM+qh)}, {f2u(-QSCALE):#x}, {v(vT+qh)}")
    for qh in range(2):
        for j in range(2): A(f"v_mul_f32 {v(vL+2*qh+j)}, {v(vL+2*qh+j)}, {v(vT+2+qh)}")
    for dt in range(4):
        for qh in range(2):
            base = (dt*2+qh)*16
            for r0 in range(0, 16, 4):
                for r in range(4): A(f"v_accvgpr_read_b32 {v(vT+4+r)}, {a(base+r0+r)}")
                for r in range(4): A(f"v_mul_f32 {v(vT+4+r)}, {v(vT+4+r)}, {v(vT+2+qh)}")
                for r in range(4): A(f"v_accvgpr_write_b32 {a(base+r0+r)}, {v(vT+4+r)}")
    A("s_nop 1")
    A(f"s_setpc_b64 {s(sRet,2)}")
    A("L_k1_epi:")
    ST(30)
    if fused:
        A("s_waitcnt vmcnt(0)")
        A(f"s_mov_b32 {s(sT2)}, {1 << 17}")
        A("L_k1_nonce_poll:")
        A(f"v_readfirstlane_b32 {s(sNonce)}, {v(vNon)}")
        A(f"s_cmp_lg_u32 {s(sNonce)}, 0\ns_cbranch_scc1 L_k1_nonce_ok")
        A(f"global_load_dword {v(vNon)}, {v(vNon+1)}, s[22:23] sc1\ns_waitcnt vmcnt(0)")
        A(f"s_sub_u32 {s(sT2)}, {s(sT2)}, 1\ns_cmp_lg_u32 {s(sT2)}, 0\ns_cbranch_scc1 L_k1_nonce_poll")
        A("L_k1_nonce_ok:")
    if stamp: A("s_memrealtime s[74:75]")
    A("s_waitcnt vmcnt(0)")
    MM = vT
    for qh in range(2):
        A(f"v_add_f32 {v(vL+2*qh)}, {v(vL+2*qh)}, {v(vL+2*qh+1)}")
        A(f"v_mov_b32 {v(vL+2*qh+1)}, {v(vL+2*qh)}")
    A("s_nop 1")
    for qh in range(2): A(f"v_permlane32_swap_b32 {v(vL+2*qh)}, {v(vL+2*qh+1)}")
    A("s_nop 1")
    for qh in range(2):
        A(f"v_add_f32 {v(MM+2+qh)}, {v(vL+2*qh)}, {v(vL+2*qh+1)}")
        A(f"v_mov_b32 {v(MM+qh)}, {v(vM+qh)}")
    A(f"v_lshlrev_b32 {v(vKa)}, 4, {L}")
    A(f"s_xor_b32 {s(sT0)}, {s(sRing)}, {2*RING}")
    A(f"v_add_u32 {v(vKa+1)}, {s(sT0)}, {v(vKa)}")
    A(f"v_add_u32 {v(vKa)}, {s(sRing)}, {v(vKa)}")
    A(f"ds_write_b128 {v(vKa)}, {v(MM,4)} offset:16384")
    A(f"v_bfe_u32 {v(vKa+2)}, {L}, 4, 1"); A(f"v_lshlrev_b32 {v(vKa+2)}, 10, {v(vKa+2)}")
    A(f"v_lshrrev_b32 {v(vKa+3)}, 5, {L}"); A(f"v_lshlrev_b32 {v(vKa+3)}, 8, {v(vKa+3)}")
    A(f"v_add_u32 {v(vKa+2)}, {v(vKa+2)}, {v(vKa+3)}")
    A(f"v_and_b32 {v(vKa+3)}, 15, {L}"); A(f"v_lshlrev_b32 {v(vKa+3)}, 4, {v(vKa+3)}")
    A(f"v_add_u32 {v(vKa+2)}, {v(vKa+2)}, {v(vKa+3)}")
    A(f"s_cmp_eq_u32 {s(sKH)}, 0")
    A("s_cbranch_scc0 L_k1_epi1")
    for kh in range(2):
        if kh == 1: A("L_k1_epi1:")
        keep = [2*kh, 2*kh+1]; send = [2*(1-kh), 2*(1-kh)+1]
        f = 0
        for dt in send:
            for qh in range(2):
                for rq in range(4):
                    A(f"ds_write_b128 {v(vKa)}, {a((dt*2+qh)*16+4*rq,4)} offset:{f*1024}"); f += 1
        A("s_waitcnt lgkmcnt(0)")
        A("s_barrier")
        A(f"ds_read_b128 {v(MM+4,4)}, {v(vKa+1)} offset:16384")
        for f in range(16): A(f"ds_read_b128 {v(vS+f*4,4)}, {v(vKa+1)} offset:{f*1024}")
        A("s_waitcnt lgkmcnt(15)")
        FS, FO = vP, vP + 2
        for qh in range(2):
            A(f"v_max_f32 {v(vP+4+qh)}, {v(MM+qh)}, {v(MM+4+qh)}")
        for qh in range(2):
            A(f"v_sub_f32 {v(FS+qh)}, {v(MM+qh)}, {v(vP+4+qh)}")
            A(f"v_sub_f32 {v(FO+qh)}, {v(MM+4+qh)}, {v(vP+4+qh)}")
        for qh in range(2):
            A(f"v_mul_f32 {v(FS+qh)}, {s(sC)}, {v(FS+qh)}")
            A(f"v_mul_f32 {v(FO+qh)}, {s(sC)}, {v(FO+qh)}")
        for qh in range(2):
            A(f"v_exp_f32 {v(FS+qh)}, {v(FS+qh)}")
            A(f"v_exp_f32 {v(FO+qh)}, {v(FO+qh)}")
        A("s_nop 0")
        for qh in range(2):
            A(f"v_mul_f32 {v(vP+4+qh)}, {v(MM+2+qh)}, {v(FS+qh)}")
            A(f"v_fma_f32 {v(vP+4+qh)}, {v(MM+6+qh)}, {v(FO+qh)}, {v(vP+4+qh)}")
        for qh in range(2): A(f"v_rcp_f32 {v(vP+4+qh)}, {v(vP+4+qh)}")
        A("s_nop 0")
        for qh in range(2):
            A(f"v_mul_f32 {v(FS+qh)}, {v(FS+qh)}, {v(vP+4+qh)}")
            A(f"v_mul_f32 {v(FO+qh)}, {v(FO+qh)}, {v(vP+4+qh)}")
        A("s_waitcnt lgkmcnt(0)")
        for dl, dt in enumerate(keep):
            A(f"s_mov_b32 {s(sT0)}, {dt*4096}")
            for qh in range(2):
                oth = vS + (dl*2+qh)*16
                own = (dt*2+qh)*16
                tmp = vVF + qh*16
                for r in range(16): A(f"v_accvgpr_read_b32 {v(tmp+r)}, {a(own+r)}")
                for r in range(16): A(f"v_mul_f32 {v(oth+r)}, {v(oth+r)}, {v(FO+qh)}")
                for r in range(16): A(f"v_fma_f32 {v(oth+r)}, {v(tmp+r)}, {v(FS+qh)}, {v(oth+r)}")
                for m in range(2):
                    dst = vQ + ((dl*2+qh)*2+m)*4
                    for j in range(4): A(f"v_cvt_pk_bf16_f32 {v(dst+j)}, {v(oth+8*m+2*j)}, {v(oth+8*m+2*j+1)}")
                    A(f"buffer_store_dwordx4 {v(dst,4)}, {v(vKa+2)}, {s(sO,4)}, {s(sT0)} offen offset:{qh*2048+m*512} {'sc1' if fused else opt.get('oflag','')}")
        A("s_branch L_k1_fin")
    A("L_k1_fin:")
    if fused:
        from tail import emit_tail
        emit_tail(A, dict(sWv=sWv, sB=sB, sH0=sH0, sType=sType, sNonce=sNonce), opt, VQ, ST)
    ST(31)
    if fst:
        A(f"s_lshl_b32 {s(sT0)}, s2, 2"); A(f"s_add_u32 {s(sT0)}, {s(sT0)}, {s(sWv)}"); A(f"s_lshl_b32 {s(sT0)}, {s(sT0)}, 8")
        A(f"s_add_u32 {s(sT0)}, {s(sT0)}, 0x2200000")
        A(f"v_lshlrev_b32 v5, 2, {L}\nv_add_u32 v5, {s(sT0)}, v5")
        A("global_store_dword v5, v250, s[20:21]")
    if stamp:
        A("s_waitcnt vmcnt(0)")
        A("s_memrealtime s[76:77]")
        A("s_waitcnt lgkmcnt(0)")
        A(f"s_lshl_b32 {s(sT0)}, s2, 2"); A(f"s_add_u32 {s(sT0)}, {s(sT0)}, {s(sWv)}"); A(f"s_lshl_b32 {s(sT0)}, {s(sT0)}, 4")
        A(f"s_add_u32 {s(sT0)}, {s(sT0)}, 0x2000000")
        A(f"v_mov_b32 v8, s70\nv_mov_b32 v9, s72\nv_mov_b32 v10, s74\nv_mov_b32 v11, s76\nv_mov_b32 v5, {s(sT0)}")
        A(f"v_cmp_eq_u32 vcc, 0, {L}\ns_and_saveexec_b64 s[80:81], vcc")
        A("global_store_dwordx4 v5, v[8:11], s[20:21]")
    A("L_k1_done:")
    A("s_endpgm")
    return A.text(), kd(name, 512, 102, 256)
```

```python
from asmlib import *
OBUF = 0x0
PART = 0x1000000
FLAG1 = 0x3000000
FLAG2 = 0x3010000
SPIN = 1 << 17

def emit_tail(A, R, opt, VQ, ST):
    sWv, sB, sH0, sType, sNonce = R["sWv"], R["sB"], R["sH0"], R["sType"], R["sNonce"]
    wflag = opt.get("woflag", "nt")
    vL, vT = 1, 2
    vWd, vWa, vOl, vAF, vAcc, vOF = 10, 19, 20, 24, 48, 120
    sW, sO, sP = 24, 28, 32
    sJ, sMT, sN4 = 36, 37, 38
    sT0, sT1, sT2, sT3 = 50, 51, 52, 53
    L = v(vL); T0, T1, T2, T3 = (v(vT+i) for i in range(4))
    Q = VQ(A)
    for i in range(8): Q.issue("ostore")
    A("s_load_dwordx2 s[4:5], s[0:1], 32\ns_load_dwordx2 s[6:7], s[0:1], 72\ns_load_dwordx2 s[8:9], s[0:1], 80")
    A(f"s_and_b32 {s(sJ)}, s2, 7\ns_lshr_b32 {s(sMT)}, {s(sB)}, 1")
    A(f"s_and_b32 {s(sT0)}, {s(sB)}, 1\ns_lshl_b32 {s(sT0)}, {s(sT0)}, 1\ns_bfe_u32 {s(sT1)}, {s(sH0)}, 0x10001\ns_add_u32 {s(sN4)}, {s(sT0)}, {s(sT1)}")
    for i in range(9):
        A(f"v_add_u32 {T0}, {i*64}, {L}")
        A(f"v_mul_u32_u24 {T1}, 3641, {T0}\nv_lshrrev_b32 {T1}, 16, {T1}")
        A(f"v_mul_u32_u24 {T2}, 18, {T1}\nv_sub_u32 {T2}, {T0}, {T2}")
        A(f"v_mul_u32_u24 {T1}, 1152, {T1}\nv_lshlrev_b32 {T2}, 4, {T2}\nv_add_u32 {v(vWd+i)}, {T1}, {T2}")
    A(f"v_lshlrev_b32 {v(vOl)}, 4, {L}")
    A("s_waitcnt lgkmcnt(0)")
    A(f"s_cmp_eq_u32 {s(sType)}, 0\ns_cselect_b32 s4, s4, s6\ns_cselect_b32 s5, s5, s7")
    A(f"s_mul_i32 {s(sT0)}, {s(sJ)}, {512*1152}\ns_mul_i32 {s(sT1)}, {s(sN4)}, 288\ns_add_u32 {s(sT0)}, {s(sT0)}, {s(sT1)}")
    A(f"s_add_u32 {s(sW)}, s4, {s(sT0)}\ns_addc_u32 {s(sW+1)}, s5, 0\ns_and_b32 {s(sW+1)}, {s(sW+1)}, 0xffff")
    A(f"s_sub_u32 {s(sW+2)}, 4718592, {s(sT0)}\ns_mov_b32 {s(sW+3)}, 0x20000")
    A("s_barrier")
    sRot = 39
    A(f"s_add_u32 {s(sRot)}, {s(sMT)}, {s(sN4)}\ns_and_b32 {s(sRot)}, {s(sRot)}, 3\ns_lshl_b32 {s(sRot)}, {s(sRot)}, 2")
    for g in range(4):
        A(f"s_add_u32 {s(sT2)}, {s(sRot)}, {4*g}\ns_add_u32 {s(sT2)}, {s(sT2)}, {s(sWv)}\ns_and_b32 {s(sT2)}, {s(sT2)}, 15")
        A(f"s_mul_i32 {s(sT0)}, {s(sT2)}, 36864\ns_mul_i32 {s(sT1)}, {s(sWv)}, 9216\ns_add_u32 {s(sT1)}, {s(sT1)}, {4*g*9216}")
        for i in range(9):
            A(f"s_add_u32 m0, {s(sT1)}, {i*1024}")
            A("s_nop 0")
            A(f"buffer_load_dwordx4 {v(vWd+i)}, {s(sW,4)}, {s(sT0)} offen {wflag} lds"); Q.issue("wo")
    A(f"s_lshl_b32 {s(sT0)}, {s(sJ)}, 1\ns_add_u32 {s(sT0)}, {s(sT0)}, {s(sType)}")
    A(f"s_lshl_b32 {s(sT1)}, {s(sT0)}, 3\ns_lshl_b32 {s(sT2)}, {s(sMT)}, 1\ns_add_u32 {s(sT1)}, {s(sT1)}, {s(sT2)}")
    A(f"s_lshr_b32 {s(sT2)}, {s(sWv)}, 1\ns_add_u32 {s(sT1)}, {s(sT1)}, {s(sT2)}\ns_lshl_b32 {s(sT1)}, {s(sT1)}, 16")
    A(f"s_and_b32 {s(sT2)}, {s(sWv)}, 1\ns_lshl_b32 {s(sT2)}, {s(sT2)}, 11\ns_add_u32 {s(sT1)}, {s(sT1)}, {s(sT2)}")
    A(f"s_add_u32 {s(sO)}, s20, {s(sT1)}\ns_addc_u32 {s(sO+1)}, s21, 0\ns_and_b32 {s(sO+1)}, {s(sO+1)}, 0xffff")
    A(f"s_mov_b32 {s(sO+2)}, 0x10000\ns_mov_b32 {s(sO+3)}, 0x20000")
    A(f"s_lshl_b32 {s(sT0)}, {s(sT0)}, 2\ns_add_u32 {s(sT0)}, {s(sT0)}, {s(sMT)}\ns_lshl_b32 {s(sT0)}, {s(sT0)}, 2\ns_add_u32 {s(sT0)}, {s(sT0)}, {s(sN4)}")
    A(f"s_lshl_b32 {s(sT0)}, {s(sT0)}, 2\ns_add_u32 {s(sT0)}, {s(sT0)}, {s(sWv)}\ns_mul_i32 {s(sT0)}, {s(sT0)}, 9216\ns_add_u32 {s(sT0)}, {s(sT0)}, {PART}")
    A(f"s_add_u32 {s(sP)}, s20, {s(sT0)}\ns_addc_u32 {s(sP+1)}, s21, 0\ns_and_b32 {s(sP+1)}, {s(sP+1)}, 0xffff")
    A(f"s_mov_b32 {s(sP+2)}, 9216\ns_mov_b32 {s(sP+3)}, 0x20000")
    A(f"v_lshrrev_b32 {T0}, 5, {L}\nv_lshlrev_b32 {T0}, 4, {T0}\nv_bfe_u32 {T1}, {L}, 4, 1\nv_lshlrev_b32 {T1}, 2, {T1}\nv_add_u32 {T0}, {T0}, {T1}")
    A(f"v_bfe_u32 {T1}, {L}, 2, 2\nv_add_u32 {T0}, {T0}, {T1}\nv_mul_u32_u24 {T0}, 288, {T0}\nv_and_b32 {T1}, 3, {L}\nv_lshlrev_b32 {T1}, 3, {T1}\nv_add_u32 {v(vWa)}, {T0}, {T1}")
    A(f"v_add_u32 {v(vWa+2)}, 0x10000, {v(vWa)}\nv_add_u32 {v(vWa+3)}, 0x20000, {v(vWa)}")
    for i in range(72): A(f"v_mov_b32 {v(vAcc+i)}, 0")
    def handoff(tag, n, flagoff_code):
        A("s_barrier")
        A(f"s_cmp_lg_u32 {s(sWv)}, 0\ns_cbranch_scc1 L_{tag}_skip")
        flagoff_code()
        A(f"s_lshl_b32 {s(sT1)}, {s(sT1)}, 2\ns_add_u32 {s(sT1)}, {s(sT1)}, {s(sT0)}")
        A(f"v_mov_b32 {T0}, {s(sT1)}\nv_mov_b32 {T1}, {s(sNonce)}")
        A(f"s_mov_b64 s[40:41], exec\ns_mov_b64 exec, 1")
        A(f"global_store_dword {T0}, {T1}, s[20:21] sc1")
        A("s_mov_b64 exec, s[40:41]")
        A(f"v_and_b32 {T2}, {n-1}, {L}\nv_lshlrev_b32 {T2}, 2, {T2}\nv_add_u32 {T2}, {s(sT0)}, {T2}")
        A(f"s_mov_b32 {s(sT2)}, {SPIN}")
        A(f"L_{tag}_poll:")
        A(f"global_load_dword {T3}, {T2}, s[20:21] sc1")
        A("s_waitcnt vmcnt(0)")
        A(f"v_cmp_ne_u32 vcc, {s(sNonce)}, {T3}")
        A(f"s_cbranch_vccz L_{tag}_skip")
        A(f"s_sleep 1\ns_sub_u32 {s(sT2)}, {s(sT2)}, 1\ns_cmp_lg_u32 {s(sT2)}, 0\ns_cbranch_scc1 L_{tag}_poll")
        A(f"L_{tag}_skip:")
        A("s_barrier")
    ST(11)
    Q.wait("ostore")
    ST(12)
    def f1():
        A(f"s_lshl_b32 {s(sT0)}, {s(sJ)}, 1\ns_add_u32 {s(sT0)}, {s(sT0)}, {s(sType)}\ns_lshl_b32 {s(sT0)}, {s(sT0)}, 2\ns_add_u32 {s(sT0)}, {s(sT0)}, {s(sMT)}")
        A(f"s_lshl_b32 {s(sT0)}, {s(sT0)}, 7\ns_add_u32 {s(sT0)}, {s(sT0)}, {FLAG1}\ns_mov_b32 {s(sT1)}, {s(sN4)}")
    handoff("h1", 4, f1)
    ST(13)
    for st in range(16):
        A(f"s_add_u32 {s(sT0)}, {s(sRot)}, {st}\ns_and_b32 {s(sT0)}, {s(sT0)}, 15\ns_lshl_b32 {s(sT0)}, {s(sT0)}, 12")
        for blk in range(2):
            A(f"buffer_load_dwordx4 {v(vOF+(st*2+blk)*4,4)}, {v(vOl)}, {s(sO,4)}, {s(sT0)} offen offset:{blk*1024} sc1"); Q.issue(f"o{st}")
    Q.wait("wo")
    A("s_barrier")
    def wa(off):
        if off < 0x10000: return v(vWa), off
        if off < 0x20000: return v(vWa+2), off - 0x10000
        return v(vWa+3), off - 0x20000
    NB = 5
    seq = [(st, nt) for st in range(16) for nt in range(9)]
    def rd(idx):
        st, nt = seq[idx]; buf = vAF + (idx % NB) * 4
        for u in range(2):
            reg, imm = wa(st*9216 + u*8*288 + nt*32)
            A(f"ds_read_b64_tr_b16 {v(buf+u*2,2)}, {reg} offset:{imm}")
    for i in range(NB - 1): rd(i)
    for idx, (st, nt) in enumerate(seq):
        if nt == 0: Q.wait(f"o{st}")
        left = min(len(seq) - 1 - idx, NB - 2)
        A(f"s_waitcnt lgkmcnt({2*left})")
        buf = vAF + (idx % NB) * 4
        for blk in range(2):
            acc = v(vAcc + (nt*2+blk)*4, 4)
            A(f"v_mfma_f32_16x16x32_bf16 {acc}, {v(buf,4)}, {v(vOF+(st*2+blk)*4,4)}, {acc}")
        if idx + NB - 1 < len(seq): rd(idx + NB - 1)
    A("s_nop 7")
    ST(14)
    for nt in range(9):
        b = vAcc + nt*8
        for blk in range(2):
            A(f"v_cvt_pk_bf16_f32 {v(vOF+nt*4+blk*2)}, {v(b+blk*4)}, {v(b+blk*4+1)}")
            A(f"v_cvt_pk_bf16_f32 {v(vOF+nt*4+blk*2+1)}, {v(b+blk*4+2)}, {v(b+blk*4+3)}")
        A(f"s_mov_b32 {s(sT0)}, {nt*1024}")
        A(f"buffer_store_dwordx4 {v(vOF+nt*4,4)}, {v(vOl)}, {s(sP,4)}, {s(sT0)} offen sc1")
    A(f"s_lshl_b32 {s(sT0)}, {s(sType)}, 2\ns_add_u32 {s(sT0)}, {s(sT0)}, {s(sMT)}\ns_lshl_b32 {s(sT0)}, {s(sT0)}, 2\ns_add_u32 {s(sT0)}, {s(sT0)}, {s(sN4)}")
    A(f"s_mul_i32 {s(sT0)}, {s(sT0)}, 36864\ns_add_u32 {s(sT0)}, {s(sT0)}, {PART}")
    A(f"s_add_u32 {s(sO)}, s20, {s(sT0)}\ns_addc_u32 {s(sO+1)}, s21, 0\ns_and_b32 {s(sO+1)}, {s(sO+1)}, 0xffff")
    A(f"s_mov_b32 {s(sO+2)}, {7*1179648 + 36864}\ns_mov_b32 {s(sO+3)}, 0x20000")
    A(f"s_mov_b32 {s(sW)}, s8\ns_and_b32 {s(sW+1)}, s9, 0xffff\ns_mov_b32 {s(sW+2)}, 1179648\ns_mov_b32 {s(sW+3)}, 0x20000")
    A(f"s_mul_i32 s42, {s(sMT)}, {128*2304}\ns_mul_i32 {s(sT1)}, {s(sType)}, 1152\ns_add_u32 s42, s42, {s(sT1)}\ns_mul_i32 {s(sT1)}, {s(sN4)}, 288\ns_add_u32 s42, s42, {s(sT1)}")
    vSl, vOa = 24, 28
    for i in range(3):
        A(f"s_mul_i32 {s(sT0)}, {s(sJ)}, 576\ns_lshl_b32 {s(sT1)}, {s(sWv)}, 6\ns_add_u32 {s(sT0)}, {s(sT0)}, {s(sT1)}")
        if i < 2: A(f"s_add_u32 {s(sT0)}, {s(sT0)}, {i*256}")
        else: A(f"s_mul_i32 {s(sT0)}, {s(sJ)}, 576\ns_add_u32 {s(sT0)}, {s(sT0)}, 512")
        A(f"v_add_u32 {T0}, {s(sT0)}, {L}")
        A(f"v_lshlrev_b32 {v(vSl+i)}, 3, {T0}")
        A(f"v_lshrrev_b32 {T1}, 7, {T0}")
        A(f"v_mul_u32_u24 {T2}, 7282, {T1}\nv_lshrrev_b32 {T2}, 16, {T2}")
        A(f"v_mul_u32_u24 {T3}, 9, {T2}\nv_sub_u32 {T1}, {T1}, {T3}")
        A(f"v_lshlrev_b32 {T1}, 5, {T1}")
        A(f"v_lshlrev_b32 {T2}, 5, {T2}")
        A(f"v_and_b32 {T3}, 1, {T0}\nv_lshlrev_b32 {T3}, 4, {T3}\nv_add_u32 {T2}, {T2}, {T3}")
        A(f"v_bfe_u32 {T3}, {T0}, 1, 4\nv_add_u32 {T2}, {T2}, {T3}")
        A(f"v_mul_u32_u24 {T2}, 2304, {T2}\nv_add_u32 {T1}, {T1}, {T2}")
        A(f"v_bfe_u32 {T3}, {T0}, 5, 2\nv_lshlrev_b32 {T3}, 3, {T3}\nv_add_u32 {v(vOa+i)}, {T1}, {T3}")
    A("s_waitcnt vmcnt(0)")
    ST(15)
    def f2():
        A(f"s_lshl_b32 {s(sT0)}, {s(sType)}, 2\ns_add_u32 {s(sT0)}, {s(sT0)}, {s(sMT)}\ns_lshl_b32 {s(sT0)}, {s(sT0)}, 2\ns_add_u32 {s(sT0)}, {s(sT0)}, {s(sN4)}")
        A(f"s_lshl_b32 {s(sT0)}, {s(sT0)}, 7\ns_add_u32 {s(sT0)}, {s(sT0)}, {FLAG2}\ns_mov_b32 {s(sT1)}, {s(sJ)}")
    handoff("h2", 8, f2)
    ST(16)
    def group(i):
        base = 32 + i*16
        for jj in range(8):
            A(f"s_mov_b32 {s(sT0)}, {jj*1179648}")
            A(f"buffer_load_dwordx2 {v(base+2*jj,2)}, {v(vSl+i)}, {s(sO,4)}, {s(sT0)} offen sc1")
    def reduce(i, later):
        base = 32 + i*16; acc = 84
        for r in range(4): A(f"v_mov_b32 {v(acc+r)}, 0")
        for jj in range(8):
            A(f"s_waitcnt vmcnt({later + 7 - jj})")
            for d in range(2):
                src = base + 2*jj + d
                A(f"v_lshlrev_b32 {v(acc+4)}, 16, {v(src)}\nv_and_b32 {v(acc+5)}, 0xffff0000, {v(src)}")
                A(f"v_add_f32 {v(acc+2*d)}, {v(acc+2*d)}, {v(acc+4)}\nv_add_f32 {v(acc+2*d+1)}, {v(acc+2*d+1)}, {v(acc+5)}")
        A(f"v_cvt_pk_bf16_f32 {v(acc+6+2*i)}, {v(acc)}, {v(acc+1)}\nv_cvt_pk_bf16_f32 {v(acc+7+2*i)}, {v(acc+2)}, {v(acc+3)}")
    A(f"s_cmp_eq_u32 {s(sWv)}, 0\ns_cbranch_scc1 L_red3")
    group(0); group(1)
    reduce(0, 8); reduce(1, 0)
    for i in range(2): A(f"buffer_store_dwordx2 {v(90+2*i,2)}, {v(vOa+i)}, {s(sW,4)}, s42 offen")
    A("s_branch L_red_done")
    A("L_red3:")
    group(0); group(1); group(2)
    reduce(0, 16); reduce(1, 8); reduce(2, 0)
    for i in range(3): A(f"buffer_store_dwordx2 {v(90+2*i,2)}, {v(vOa+i)}, {s(sW,4)}, s42 offen")
    A("L_red_done:")
```

```python
import sys, json
from k1 import gen_k1
from k2 import gen_k2
from k2b import gen_k2b, gen_k3
KNAME = "concat_heads__gqa_block_cached__mha_block_cached__near_ridge"
HEADER = open("cdna_kernels/" + KNAME + ".s.ref").read().split("; Override launch")[0]
def build(opt):
    k1n, k2n = "attn_kernel", "oproj_kernel"
    if opt.get("fused"):
        k1n = KNAME + "_kernel"
        t1, d1 = gen_k1(k1n, opt)
        out = HEADER + "; Override launch geometry by editing the next line (default: block=256,\n; grid=ceil(out_elems/256), lds=0). Harness parses it; keep it on one line.\n"
        out += "; @launch grid=(256,1,1) block=(256,1,1) lds=163840\n"
        out += '.amdgcn_target "amdgcn-amd-amdhsa--gfx950"\n.text\n' + t1
        out += '.section .rodata,"a"\n.p2align 6\n' + d1
        return out
    t1, d1 = gen_k1(k1n, opt)
    if opt.get("beta", True):
        t2, d2 = gen_k2b(k2n, opt); t3, d3 = gen_k3("reduce_kernel", opt)
        out = HEADER
        out += f"; @launch kernel={k1n} grid=(256,1,1) block=(256,1,1) lds=163840\n"
        out += f"; @launch kernel={k2n} grid=(256,1,1) block=(256,1,1) lds=147456\n"
        out += f"; @launch kernel=reduce_kernel grid=(288,1,1) block=(256,1,1) lds=0\n"
        out += '.amdgcn_target "amdgcn-amd-amdhsa--gfx950"\n.text\n' + t1 + t2 + t3
        out += '.section .rodata,"a"\n.p2align 6\n' + d1 + ".p2align 6\n" + d2 + ".p2align 6\n" + d3
        return out
    t2, d2 = gen_k2(k2n, opt)
    out = HEADER
    out += f"; @launch kernel={k1n} grid=(256,1,1) block=(256,1,1) lds=163840\n"
    if not opt.get("k1only"):
        out += f"; @launch kernel={k2n} grid=(256,1,1) block=(256,1,1) lds=131072\n"
    out += '.amdgcn_target "amdgcn-amd-amdhsa--gfx950"\n.text\n' + t1 + t2
    out += '.section .rodata,"a"\n.p2align 6\n' + d1 + ".p2align 6\n" + d2
    return out
if __name__ == "__main__":
    path = sys.argv[1]
    opt = json.loads(sys.argv[2]) if len(sys.argv) > 2 else {}
    open(path, "w").write(build(opt))
```

```python
from asmlib import *
import math

LOG2E = 1.4426950408889634
QSCALE = LOG2E / math.sqrt(128.0)
def f2u(x):
    import struct
    return struct.unpack("<I", struct.pack("<f", x))[0]

RING = 32768
KA, VA, KB, VB = 0, 8192, 16384, 24576
EXTRA = 131072
vTID, vLANE = 0, 1
vDMA = 2
vKa = 6
vVa = 14
vM = 22
vMT = 24
vL = 26
vT = 30
vNM = 38
vNon = 216
vQ = 40
vS = 104
vKF = 136
vVF = 168
vP = 200
NV = 216
vQacc = 104
vWF2 = 40
vWdma = 200
vXdma = 204
vWa = 205
vXa = 207
sK, sV, sX, sW, sO = 24, 28, 32, 36, 40
sWv, sHH, sKH, sRing, sKoff, sCnt = 44, 45, 46, 47, 48, 49
sT0, sT1, sT2, sT3 = 50, 51, 52, 53
sRot, sB, sH0, sType = 54, 55, 56, 57
sTile = 58
sXw, sXl = 59, 60
sC = 61
sNonce = 62
sM0, sM1 = 64, 66
sRet = 68

class VQ:
    def __init__(self, A): self.q = []; self.A = A
    def issue(self, tag): self.q.append(tag)
    def wait(self, *tags):
        idx = [i for i, t in enumerate(self.q) if t in tags]
        if not idx: return
        last = max(idx)
        n = len(self.q) - 1 - last
        assert n <= 63, n
        self.A(f"s_waitcnt vmcnt({n})")
        self.q = self.q[last + 1:]
    def wait_all(self):
        self.A("s_waitcnt vmcnt(0)"); self.q = []

def gen_k1(name, opt):
    A = Asm()
    fine = opt.get("fine", True)
    kvflag = opt.get("kvflag", "nt")
    wflag = opt.get("wflag", "nt"); xflag = opt.get("xflag", "")
    k0_k = opt.get("k0_k", 23); v0_k = opt.get("v0_k", 36)
    assert k0_k >= 23 and v0_k >= 27
    THR = opt.get("thr", 8.0)
    dbg = opt.get("dbg", None)
    stamp = opt.get("stamp", False)
    dst = opt.get("dbgstamp", False)
    def DS(i):
        if dst: A(f"s_memrealtime s[{84+2*i}:{85+2*i}]")
    fst = opt.get("fstamp", False)
    def ST(i):
        if fst and (fst is True or i in fst):
            A("s_memrealtime s[80:81]\ns_memtime s[82:83]\ns_waitcnt lgkmcnt(0)"); A(f"v_writelane_b32 v250, s80, {i}"); A(f"v_writelane_b32 v250, s82, {i+32}")
    A(f".globl {name}\n.p2align 8\n.type {name},@function\n{name}:")
    A(f"s_cmp_ge_u32 s2, 256\ns_cbranch_scc1 L_k1_done")
    if stamp: A("s_memrealtime s[70:71]")
    A("s_load_dwordx8 s[4:11], s[0:1], 0")
    A("s_load_dwordx8 s[12:19], s[0:1], 40")
    A("s_load_dwordx2 s[20:21], s[0:1], 96")
    A("s_load_dwordx2 s[22:23], s[0:1], 88")
    A(f"v_lshrrev_b32 {v(vT)}, 6, v0")
    A(f"v_and_b32 {v(vLANE)}, 63, v0")
    A(f"v_readfirstlane_b32 {s(sWv)}, {v(vT)}")
    A(f"s_and_b32 {s(sT0)}, s2, 7")
    A(f"s_lshr_b32 {s(sT1)}, s2, 3")
    A(f"s_and_b32 {s(sType)}, {s(sT1)}, 1")
    A(f"s_lshr_b32 {s(sT1)}, {s(sT1)}, 1")
    A(f"s_and_b32 {s(sT2)}, {s(sT1)}, 1")
    A(f"s_lshr_b32 {s(sB)}, {s(sT1)}, 1")
    A(f"s_lshl_b32 {s(sH0)}, {s(sT0)}, 2")
    A(f"s_lshl_b32 {s(sT3)}, {s(sT2)}, 1")
    A(f"s_add_u32 {s(sH0)}, {s(sH0)}, {s(sT3)}")
    A(f"s_lshl_b32 {s(sT3)}, {s(sT2)}, 2")
    A(f"s_add_u32 {s(sRot)}, {s(sB)}, {s(sT3)}")
    A(f"s_and_b32 {s(sRot)}, {s(sRot)}, 7")
    A(f"s_and_b32 {s(sHH)}, {s(sWv)}, 1")
    A(f"s_lshr_b32 {s(sKH)}, {s(sWv)}, 1")
    A(f"s_lshl_b32 {s(sRing)}, {s(sWv)}, 15")
    A("s_waitcnt lgkmcnt(0)")
    A(f"s_cmp_eq_u32 {s(sType)}, 0")
    for i in range(8): A(f"s_cselect_b32 {s(4+i)}, {s(4+i)}, {s(12+i)}")
    A(f"s_add_u32 {s(sT0)}, {s(sH0)}, {s(sHH)}")
    A(f"s_lshl_b32 {s(sT1)}, {s(sB)}, 5")
    A(f"s_add_u32 {s(sT1)}, {s(sT1)}, {s(sT0)}")
    A(f"s_lshr_b32 {s(sT2)}, {s(sH0)}, 1")
    A(f"s_lshl_b32 {s(sT3)}, {s(sB)}, 4")
    A(f"s_add_u32 {s(sT2)}, {s(sT2)}, {s(sT3)}")
    A(f"s_cmp_eq_u32 {s(sType)}, 0")
    A(f"s_cselect_b32 {s(sT2)}, {s(sT2)}, {s(sT1)}")
    A(f"s_lshl_b32 {s(sT2)}, {s(sT2)}, 18")
    for srd, p in ((sK, 6), (sV, 8)):
        A(f"s_add_u32 {s(srd)}, {s(p)}, {s(sT2)}")
        A(f"s_addc_u32 {s(srd+1)}, {s(p+1)}, 0")
        A(f"s_and_b32 {s(srd+1)}, {s(srd+1)}, 0xffff")
        A(f"s_mov_b32 {s(srd+2)}, 0x40000")
        A(f"s_mov_b32 {s(srd+3)}, 0x20000")
    fused = opt.get("fused", False)
    if fused:
        A(f"s_and_b32 {s(sT1)}, s2, 7\ns_lshl_b32 {s(sT1)}, {s(sT1)}, 1\ns_add_u32 {s(sT1)}, {s(sT1)}, {s(sType)}")
        A(f"s_lshl_b32 {s(sT1)}, {s(sT1)}, 3\ns_add_u32 {s(sT1)}, {s(sT1)}, {s(sB)}\ns_lshl_b32 {s(sT1)}, {s(sT1)}, 2")
        A(f"s_and_b32 {s(sT2)}, {s(sT0)}, 3\ns_add_u32 {s(sT1)}, {s(sT1)}, {s(sT2)}")
    else:
        A(f"s_lshl_b32 {s(sT2)}, {s(sType)}, 8")
        A(f"s_add_u32 {s(sT1)}, {s(sT1)}, {s(sT2)}")
    A(f"s_lshl_b32 {s(sT1)}, {s(sT1)}, 14")
    A(f"s_add_u32 {s(sO)}, s20, {s(sT1)}")
    A(f"s_addc_u32 {s(sO+1)}, s21, 0")
    A(f"s_and_b32 {s(sO+1)}, {s(sO+1)}, 0xffff")
    A(f"s_mov_b32 {s(sO+2)}, 16384")
    A(f"s_mov_b32 {s(sO+3)}, 0x20000")
    A(f"s_mul_i32 {s(sT1)}, {s(sB)}, 73728")
    A(f"s_add_u32 {s(sX)}, s4, {s(sT1)}")
    A(f"s_addc_u32 {s(sX+1)}, s5, 0")
    A(f"s_and_b32 {s(sX+1)}, {s(sX+1)}, 0xffff")
    A(f"s_mov_b32 {s(sX+2)}, 73728")
    A(f"s_mov_b32 {s(sX+3)}, 0x20000")
    A(f"s_lshl_b32 {s(sT1)}, {s(sT0)}, 8")
    A(f"s_lshl_b32 {s(sT2)}, {s(sKH)}, 7")
    A(f"s_add_u32 {s(sT1)}, {s(sT1)}, {s(sT2)}")
    A(f"s_add_u32 {s(sW)}, s10, {s(sT1)}")
    A(f"s_addc_u32 {s(sW+1)}, s11, 0")
    A(f"s_and_b32 {s(sW+1)}, {s(sW+1)}, 0xffff")
    A(f"s_sub_u32 {s(sW+2)}, 4718592, {s(sT1)}")
    A(f"s_mov_b32 {s(sW+3)}, 0x20000")
    L = v(vLANE); T0, T1, T2, T3 = (v(vT + i) for i in range(4))
    A(f"v_lshrrev_b32 {T0}, 4, {L}")
    A(f"s_lshl_b32 {s(sT1)}, {s(sHH)}, 2")
    A(f"v_or_b32 {T0}, {s(sT1)}, {T0}")
    A(f"v_and_b32 {T1}, 7, {L}")
    A(f"v_xor_b32 {T0}, {T0}, {T1}")
    A(f"v_lshlrev_b32 {T0}, 4, {T0}")
    A(f"v_lshrrev_b32 {T1}, 3, {L}")
    A(f"v_mul_u32_u24 {T2}, 1152, {T1}")
    A(f"v_add_u32 {v(vXdma)}, {T0}, {T2}")
    A(f"v_lshrrev_b32 {T0}, 4, {L}")
    A(f"v_and_b32 {T0}, 1, {T0}")
    A(f"v_lshlrev_b32 {T0}, 2, {T0}")
    A(f"v_and_b32 {T2}, 7, {L}")
    A(f"v_xor_b32 {T0}, {T0}, {T2}")
    A(f"v_lshlrev_b32 {T0}, 4, {T0}")
    A(f"v_lshlrev_b32 {T1}, 13, {T1}")
    A(f"v_add_u32 {v(vWdma)}, {T0}, {T1}")
    for n in range(1, 4): A(f"v_add_u32 {v(vWdma+n)}, {n*64512}, {v(vWdma)}")
    Q = VQ(A)
    if fused:
        A(f"s_or_b32 {s(sT0)}, s2, {s(sWv)}\ns_cmp_eq_u32 {s(sT0)}, 0\ns_cbranch_scc0 L_k1_nonce_done")
        A(f"s_memrealtime s[62:63]\ns_waitcnt lgkmcnt(0)\ns_or_b32 s62, s62, 1")
        A(f"v_mov_b32 {T0}, s62\nv_mov_b32 {T1}, 0")
        A(f"s_mov_b64 s[62:63], exec\ns_mov_b64 exec, 1")
        A(f"global_store_dword {T1}, {T0}, s[22:23] sc1")
        A("s_mov_b64 exec, s[62:63]")
        A("L_k1_nonce_done:")
    if fst: A("v_mov_b32 v250, 0")
    ST(0)
    XSLOT = [EXTRA + (i & 3)*8192 for i in range(9)]
    def tile_of(t, dst):
        A(f"s_add_u32 {s(dst)}, {s(sRot)}, {t}")
        A(f"s_cmp_ge_u32 {s(dst)}, 9")
        A(f"s_cselect_b32 {s(sT3)}, 9, 0")
        A(f"s_sub_u32 {s(dst)}, {s(dst)}, {s(sT3)}")
    def issue_x(t):
        tile_of(t, sT0)
        A(f"s_lshl_b32 {s(sT0)}, {s(sT0)}, 7")
        A(f"s_add_u32 {s(sT0)}, {s(sT0)}, {s(sXw)}")
        A(f"s_add_u32 m0, {s(sXl)}, {XSLOT[t]}")
        A(f"s_add_u32 {s(sT2)}, {s(sT0)}, {4*9216}")
        A(f"buffer_load_dwordx4 {v(vXdma)}, {s(sX,4)}, {s(sT0)} offen {xflag} lds"); Q.issue(f"x{t}")
        A(f"s_add_u32 m0, {s(sXl)}, {XSLOT[t] + 4096}")
        A("s_nop 0")
        A(f"buffer_load_dwordx4 {v(vXdma)}, {s(sX,4)}, {s(sT2)} offen {xflag} lds"); Q.issue(f"x{t}")
    WPOS = {0: KB, 1: KB+4096, 2: VB, 3: VB+4096, 4: KA, 5: KA+4096, 6: VA, 7: VA+4096, 8: KB, 9: KB+4096,
            10: KA, 11: KA+4096, 12: VA, 13: VA+4096, 14: VB, 15: VB+4096, 16: KB, 17: KB+4096}
    WISSUE = {4: 0, 5: 1, 6: 2, 7: 3, 8: 4, 9: 5, 14: 6, 15: 7, 10: 9, 11: 11, 12: 13, 13: 15, 16: 17, 17: 19}
    def issue_w(hs):
        tile_of(hs >> 1, sT0)
        A(f"s_lshl_b32 {s(sT0)}, {s(sT0)}, 19")
        A(f"s_add_u32 m0, {s(sRing)}, {WPOS[hs]}")
        if hs & 1: A(f"s_add_u32 {s(sT0)}, {s(sT0)}, {32*8192}")
        else: A("s_nop 0")
        for n in range(4):
            A(f"buffer_load_dwordx4 {v(vWdma+n)}, {s(sW,4)}, {s(sT0)} offen offset:{n*1024} {wflag} lds"); Q.issue(f"w{hs}")
    def issue_kv(srd, slot, tag, q=None):
        hs = 8192 if fine else 4096
        for half in range(2):
            A(f"s_add_u32 m0, {s(sRing)}, {slot + half*4096}")
            A(f"s_add_u32 {s(sT0)}, {s(sKoff)}, {half*hs}")
            for n in range(4):
                A(f"buffer_load_dwordx4 {v(vDMA+n)}, {s(srd,4)}, {s(sT0)} offen offset:{n*1024} {kvflag} lds")
                if q is not None: q.issue(tag)
    A(f"s_mov_b32 {s(sC)}, {f2u(QSCALE):#x}")
    A(f"s_mul_i32 {s(sXw)}, {s(sWv)}, 9216")
    A(f"s_lshl_b32 {s(sXl)}, {s(sWv)}, 10")
    if opt.get("warm", True):
        A(f"s_lshr_b32 {s(sT0)}, s2, 4\ns_lshl_b32 {s(sT0)}, {s(sT0)}, 2\ns_add_u32 {s(sT0)}, {s(sT0)}, {s(sWv)}")
        A(f"s_mov_b32 s12, s10\ns_and_b32 s13, s11, 0xffff\ns_mov_b32 s14, 4718592\ns_mov_b32 s15, 0x20000")
        A(f"s_mov_b32 s16, s4\ns_and_b32 s17, s5, 0xffff\ns_mov_b32 s18, 589824\ns_mov_b32 s19, 0x20000")
        A(f"v_lshlrev_b32 {T3}, 4, {L}")
        A(f"s_mul_i32 {s(sT1)}, {s(sT0)}, {9*8192}\ns_and_b32 {s(sT2)}, s2, 7\ns_lshl_b32 {s(sT2)}, {s(sT2)}, 10\ns_add_u32 {s(sT1)}, {s(sT1)}, {s(sT2)}")
        A(f"s_mul_i32 {s(sT0)}, {s(sT0)}, 9216")
        for i in range(9):
            A(f"buffer_load_dwordx4 v[104:107], {T3}, s[12:15], {s(sT1)} offen {wflag}"); Q.issue("warm")
            A(f"buffer_load_dwordx4 v[104:107], {T3}, s[16:19], {s(sT0)} offen {xflag}"); Q.issue("warm")
            if i < 8: A(f"s_add_u32 {s(sT1)}, {s(sT1)}, 8192\ns_add_u32 {s(sT0)}, {s(sT0)}, 1024")
    issue_x(0); issue_w(0); issue_w(1)
    ST(20)
    A(f"v_lshrrev_b32 {T0}, 4, {L}")
    A(f"v_lshlrev_b32 {T1}, 2, {T0}")
    A(f"v_and_b32 {T2}, 15, {L}")
    A(f"v_xor_b32 {T1}, {T1}, {T2}")
    A(f"v_lshlrev_b32 {T0}, 8, {T0}")
    for n in range(4):
        A(f"v_xor_b32 {T2}, {n}, {T1}")
        A(f"v_lshlrev_b32 {T2}, 4, {T2}")
        A(f"v_add_u32 {v(vDMA+n)}, {T0}, {T2}")
        if fine and n: A(f"v_add_u32 {v(vDMA+n)}, {n*1024}, {v(vDMA+n)}")
    A(f"s_lshl_b32 {s(sKoff)}, {s(sKH)}, {10 if fine else 13}")
    A(f"v_and_b32 {T0}, 31, {L}")
    A(f"v_and_b32 {T1}, 3, {T0}")
    A(f"v_lshlrev_b32 {T1}, 2, {T1}")
    A(f"v_bfe_u32 {T2}, {T0}, 2, 2")
    A(f"v_or_b32 {T1}, {T1}, {T2}")
    A(f"v_lshrrev_b32 {T2}, 5, {L}")
    A(f"v_xor_b32 {T1}, {T1}, {T2}")
    A(f"v_lshlrev_b32 {T1}, 4, {T1}")
    A(f"v_lshlrev_b32 {T0}, 8, {T0}")
    A(f"v_add_u32 {T0}, {T0}, {T1}")
    A(f"v_add_u32 {v(vKa)}, {s(sRing)}, {T0}")
    for kk in range(1, 8): A(f"v_xor_b32 {v(vKa+kk)}, {kk<<5}, {v(vKa)}")
    A(f"v_bfe_u32 {T0}, {L}, 4, 1")
    A(f"v_lshlrev_b32 {T0}, 1, {T0}")
    A(f"v_bfe_u32 {T1}, {L}, 1, 1")
    A(f"v_or_b32 {T0}, {T0}, {T1}")
    A(f"v_bfe_u32 {T1}, {L}, 2, 2")
    A(f"v_lshlrev_b32 {T2}, 2, {T1}")
    A(f"v_xor_b32 {T0}, {T0}, {T2}")
    A(f"v_lshrrev_b32 {T2}, 5, {L}")
    A(f"v_xor_b32 {T0}, {T0}, {T2}")
    A(f"v_lshlrev_b32 {T0}, 4, {T0}")
    A(f"v_lshlrev_b32 {T2}, 2, {T2}")
    A(f"v_add_u32 {T1}, {T1}, {T2}")
    A(f"v_lshlrev_b32 {T1}, 8, {T1}")
    A(f"v_add_u32 {T0}, {T0}, {T1}")
    A(f"v_and_b32 {T1}, 1, {L}")
    A(f"v_lshlrev_b32 {T1}, 3, {T1}")
    A(f"v_add_u32 {T0}, {T0}, {T1}")
    A(f"v_add_u32 {T0}, {s(sRing)}, {T0}")
    for dt in range(4):
        for u in range(2):
            A(f"v_xor_b32 {v(vVa+dt*2+u)}, {(dt<<6)|(u<<5)}, {T0}")
            if u: A(f"v_add_u32 {v(vVa+dt*2+u)}, 2048, {v(vVa+dt*2+u)}")
    A(f"v_bfe_u32 {T0}, {L}, 4, 1")
    A(f"v_lshlrev_b32 {T0}, 1, {T0}")
    A(f"v_and_b32 {T1}, 1, {L}")
    A(f"v_or_b32 {T0}, {T0}, {T1}")
    A(f"v_bfe_u32 {T1}, {L}, 3, 1")
    A(f"v_lshlrev_b32 {T1}, 2, {T1}")
    A(f"v_xor_b32 {T0}, {T0}, {T1}")
    A(f"v_lshlrev_b32 {T0}, 4, {T0}")
    A(f"v_bfe_u32 {T1}, {L}, 2, 2")
    A(f"v_lshrrev_b32 {T2}, 5, {L}")
    A(f"v_lshlrev_b32 {T2}, 3, {T2}")
    A(f"v_add_u32 {T1}, {T1}, {T2}")
    A(f"v_lshlrev_b32 {T1}, 7, {T1}")
    A(f"v_add_u32 {T0}, {T0}, {T1}")
    A(f"v_bfe_u32 {T1}, {L}, 1, 1")
    A(f"v_lshlrev_b32 {T1}, 3, {T1}")
    A(f"v_add_u32 {T0}, {T0}, {T1}")
    A(f"v_add_u32 {T0}, {s(sRing)}, {T0}")
    A(f"v_mov_b32 {v(vWa)}, {T0}")
    A(f"v_xor_b32 {v(vWa+1)}, 64, {v(vWa)}")
    A(f"v_and_b32 {T0}, 31, {L}")
    A(f"v_bfe_u32 {T1}, {T0}, 1, 3")
    A(f"v_lshrrev_b32 {T2}, 5, {L}")
    A(f"v_xor_b32 {T1}, {T1}, {T2}")
    A(f"v_lshlrev_b32 {T1}, 4, {T1}")
    A(f"v_lshlrev_b32 {T0}, 7, {T0}")
    A(f"v_add_u32 {T0}, {T0}, {T1}")
    A(f"v_mov_b32 {v(vXa)}, {T0}")
    for kk in range(1, 4): A(f"v_xor_b32 {v(vXa+kk)}, {kk<<5}, {v(vXa)}")
    ST(23)
    for i in range(128): A(f"v_accvgpr_write_b32 {a(i)}, 0")
    for qh in range(2):
        A(f"v_mov_b32 {v(vL+2*qh)}, 0"); A(f"v_mov_b32 {v(vL+2*qh+1)}, 0")
    issue_x(1); issue_w(2); issue_w(3)
    if k0_k == -1: issue_kv(sK, KA, "K0", Q)
    if v0_k == -1: issue_kv(sV, VA, "V0", Q)
    ST(24)
    vXc = vXa + 4
    def rbuf(k): return vWF2 + (k % 3) * 16
    def read_list(k):
        hs, kl, t, kk = k >> 1, k & 1, k >> 2, k & 3
        buf = rbuf(k); out = []
        for dt in range(2):
            for u in range(2):
                out.append(f"ds_read_b64_tr_b16 {v(buf+dt*4+u*2,2)}, {v(vWa+dt)} offset:{WPOS[hs] + kl*2048 + u*512}")
        for qh in range(2):
            out.append(f"ds_read_b128 {v(buf+8+qh*4,4)}, {v(vXc+kk)} offset:{qh*4096}")
        return out
    def pre_reads(k):
        hs, t, kk = k >> 1, k >> 2, k & 3
        if kk == 0:
            Q.wait(f"x{t}", f"w{hs}")
            if not (opt.get("exp_nobar") and t > 0): A("s_barrier")
            for j in range(4): A(f"v_add_u32 {v(vXc+j)}, {XSLOT[t]}, {v(vXa+j)}")
        elif k & 1 == 0:
            Q.wait(f"w{hs}")
    pre_reads(0)
    ST(1)
    for i in read_list(0): A(i)
    for i in read_list(1): A(i)
    for k in range(36):
        hs = k >> 1
        rl = []
        if k + 2 < 36:
            pre_reads(k + 2); rl = read_list(k + 2)
        A(f"s_waitcnt lgkmcnt({6 if k + 1 < 36 else 0})")
        buf = rbuf(k); n = 0
        for dt in range(2):
            for qh in range(2):
                acc = v(vQacc + (dt*2+qh)*16, 16)
                c = "0" if k == 0 else acc
                A(f"v_mfma_f32_32x32x16_bf16 {acc}, {v(buf+dt*4,4)}, {v(buf+8+qh*4,4)}, {c}")
                if opt.get("exp_noilv"):
                    if n == 3:
                        for i in rl: A(i)
                else:
                    for i in rl[2*n:2*n+2]: A(i)
                n += 1
        if k == 0: issue_x(2)
        if k == 2: issue_x(3)
        for n_, kk_ in WISSUE.items():
            if kk_ == k: issue_w(n_)
        if (k + 2) & 3 == 0 and k + 2 < 36 and ((k + 2) >> 2) >= 2 and ((k + 2) >> 2) + 2 < 9: issue_x(((k + 2) >> 2) + 2)
        if k == k0_k: issue_kv(sK, KA, "K0", Q)
        if k == v0_k: issue_kv(sV, VA, "V0", Q)
        if k & 3 == 3: ST(2 + (k >> 2))
    A("s_nop 7\ns_nop 5")
    ST(25)
    A("s_barrier")
    ST(26)
    A(f"s_lshl_b32 {s(sT1)}, {s(sWv)}, 13")
    A(f"v_lshlrev_b32 {T0}, 4, {L}")
    A(f"v_add_u32 {T1}, {s(sT1)}, {T0}")
    A(f"v_add_u32 {T1}, {EXTRA}, {T1}")
    A(f"s_lshl_b32 {s(sT1)}, {s(sHH)}, 13")
    A(f"v_add_u32 {T2}, {s(sT1)}, {T0}")
    A(f"v_add_u32 {T2}, {EXTRA}, {T2}")
    for dt in range(2):
        for qh in range(2):
            acc = vQacc + (dt*2+qh)*16
            for m in range(2):
                dst = vVF + ((dt*2+m)*2+qh)*4
                for j in range(4): A(f"v_cvt_pk_bf16_f32 {v(dst+j)}, {v(acc+8*m+2*j)}, {v(acc+8*m+2*j+1)}")
    if v0_k == 36: issue_kv(sV, VA, "V0", Q)
    ST(27)
    for f in range(8): A(f"ds_write_b128 {T1}, {v(vVF+f*4,4)} offset:{f*1024}")
    A("s_waitcnt lgkmcnt(0)")
    A("s_barrier")
    ST(28)
    for half in range(2):
        for kl in range(4):
            for qh in range(2):
                kk = half*4 + kl
                A(f"ds_read_b128 {v(vQ+qh*32+kk*4,4)}, {T2} offset:{half*16384 + (kl*2+qh)*1024}")
        A("s_waitcnt lgkmcnt(0)")
    if dbg == "q":
        A(f"s_lshl_b32 {s(sT0)}, s2, 2"); A(f"s_add_u32 {s(sT0)}, {s(sT0)}, {s(sWv)}"); A(f"s_lshl_b32 {s(sT0)}, {s(sT0)}, 14")
        A(f"s_add_u32 {s(sT0)}, {s(sT0)}, 0x1000000")
        A(f"v_lshlrev_b32 {T0}, 4, {L}"); A(f"v_add_u32 {T0}, {s(sT0)}, {T0}")
        for f in range(16):
            A(f"global_store_dwordx4 {T0}, {v(vQ+f*4,4)}, s[20:21]"); A(f"v_add_u32 {T0}, 1024, {T0}")
        A("s_waitcnt vmcnt(0)")
    ST(19)
    DS(0)
    if stamp: A("s_memrealtime s[72:73]")
    A(f"s_add_u32 {s(sKoff)}, {s(sKoff)}, 16384")
    def tile(par, kind, uid):
        ks, vs = (KA, VA) if par == 0 else (KB, VB)
        kw = {"first": 8, "mid": 24, "pen": 24, "last": 8 + (1 if fused else 0)}[kind]
        vw = {"first": 16, "mid": 24, "pen": 16, "last": 0}[kind]
        A(f"s_waitcnt vmcnt({kw})")
        for kk in range(8): A(f"ds_read_b128 {v(vKF+kk*4,4)}, {v(vKa+kk)} offset:{ks}")
        for kk in range(8):
            A(f"s_waitcnt lgkmcnt({7-kk})")
            for qh in range(2):
                acc = v(vS+16*qh, 16)
                A(f"v_mfma_f32_32x32x16_bf16 {acc}, {v(vKF+kk*4,4)}, {v(vQ+qh*32+kk*4,4)}, {'0' if kk == 0 else acc}")
        if kind == "first": issue_kv(sK, KB, None); A("s_nop 1")
        elif kind == "mid": issue_kv(sK, ks, None); A("s_nop 1")
        else: A("s_nop 7\ns_nop 5")
        for qh in range(2):
            b = vS + 16*qh; t = v(vT+qh)
            A(f"v_max3_f32 {t}, {v(b)}, {v(b+1)}, {v(b+2)}")
            for i in range(3, 15, 2): A(f"v_max3_f32 {t}, {t}, {v(b+i)}, {v(b+i+1)}")
            A(f"v_max_f32 {t}, {t}, {v(b+15)}")
        if kind == "first":
            for qh in range(2): A(f"v_mov_b32 {v(vT+2+qh)}, {v(vT+qh)}")
            A("s_nop 1")
            for qh in range(2): A(f"v_permlane32_swap_b32 {v(vT+qh)}, {v(vT+2+qh)}")
            A("s_nop 1")
            for qh in range(2): A(f"v_max_f32 {v(vM+qh)}, {v(vT+qh)}, {v(vT+2+qh)}")
            for qh in range(2):
                A(f"v_add_f32 {v(vMT+qh)}, {f2u(THR/QSCALE):#x}, {v(vM+qh)}")
                A(f"v_mul_f32 {v(vNM+qh)}, {f2u(-QSCALE):#x}, {v(vM+qh)}")
        else:
            A(f"v_cmp_gt_f32 vcc, {v(vT)}, {v(vMT)}")
            A(f"v_cmp_gt_f32 {s(sM0,2)}, {v(vT+1)}, {v(vMT+1)}")
            A(f"s_or_b64 {s(sM0,2)}, {s(sM0,2)}, vcc")
            A(f"s_cbranch_scc0 L_k1_back{uid}")
            A(f"s_call_b64 {s(sRet,2)}, L_k1_rare")
            A(f"L_k1_back{uid}:")
        for qh in range(2):
            b = vS + 16*qh
            for i in range(16): A(f"v_fma_f32 {v(b+i)}, {v(b+i)}, {s(sC)}, {v(vNM+qh)}")
            for i in range(16): A(f"v_exp_f32 {v(b+i)}, {v(b+i)}")
        for qh in range(2):
            b = vS + 16*qh
            for i in range(16): A(f"v_add_f32 {v(vL+2*qh+(i&1))}, {v(vL+2*qh+(i&1))}, {v(b+i)}")
            for m in range(2):
                for j in range(4): A(f"v_cvt_pk_bf16_f32 {v(vP+qh*8+m*4+j)}, {v(b+8*m+2*j)}, {v(b+8*m+2*j+1)}")
        if kind == "first":
            issue_kv(sV, VB, None)
            A(f"s_add_u32 {s(sKoff)}, {s(sKoff)}, 16384")
        if fused and kind == "pen":
            A(f"v_mov_b32 {v(vNon+1)}, 0")
            A(f"global_load_dword {v(vNon)}, {v(vNon+1)}, s[22:23] sc1")
        if fused and kind in ("pen", "last"): vw += 1
        A(f"s_waitcnt vmcnt({vw})")
        for dt in range(4):
            for m in range(2):
                for u in range(2):
                    A(f"ds_read_b64_tr_b16 {v(vVF+(dt*2+m)*4+u*2,2)}, {v(vVa+dt*2+u)} offset:{vs + m*4096}")
        for dt in range(4):
            for m in range(2):
                A(f"s_waitcnt lgkmcnt({14-(dt*2+m)*2})")
                for qh in range(2):
                    acc = a((dt*2+qh)*16, 16)
                    A(f"v_mfma_f32_32x32x16_bf16 {acc}, {v(vVF+(dt*2+m)*4,4)}, {v(vP+qh*8+m*4,4)}, {acc}")
        if kind == "first":
            issue_kv(sK, KA, None); issue_kv(sV, VA, None)
            A(f"s_add_u32 {s(sKoff)}, {s(sKoff)}, 16384")
        elif kind == "mid":
            issue_kv(sV, vs, None)
            A(f"s_add_u32 {s(sKoff)}, {s(sKoff)}, 16384")
    tile(0, "first", 0)
    ST(29)
    A(f"s_mov_b32 {s(sTile)}, 1")
    A("L_k1_loop:")
    tile(1, "mid", 1)
    A(f"s_cmp_eq_u32 {s(sTile)}, 13")
    A("s_cbranch_scc1 L_k1_tail")
    tile(0, "mid", 2)
    A(f"s_add_u32 {s(sTile)}, {s(sTile)}, 2")
    A("s_branch L_k1_loop")
    A("L_k1_tail:")
    tile(0, "pen", 3)
    tile(1, "last", 4)
    A("s_branch L_k1_epi")
    A("L_k1_rare:")
    for qh in range(2): A(f"v_mov_b32 {v(vT+2+qh)}, {v(vT+qh)}")
    A("s_nop 1")
    for qh in range(2): A(f"v_permlane32_swap_b32 {v(vT+qh)}, {v(vT+2+qh)}")
    A("s_nop 1")
    for qh in range(2):
        A(f"v_max3_f32 {v(vT+qh)}, {v(vT+qh)}, {v(vT+2+qh)}, {v(vM+qh)}")
    for qh in range(2):
        A(f"v_sub_f32 {v(vT+2+qh)}, {v(vM+qh)}, {v(vT+qh)}")
    for qh in range(2): A(f"v_mul_f32 {v(vT+2+qh)}, {s(sC)}, {v(vT+2+qh)}")
    for qh in range(2): A(f"v_exp_f32 {v(vT+2+qh)}, {v(vT+2+qh)}")
    for qh in range(2):
        A(f"v_mov_b32 {v(vM+qh)}, {v(vT+qh)}")
        A(f"v_add_f32 {v(vMT+qh)}, {f2u(THR/QSCALE):#x}, {v(vT+qh)}")
        A(f"v_mul_f32 {v(vNM+qh)}, {f2u(-QSCALE):#x}, {v(vT+qh)}")
    for qh in range(2):
        for j in range(2): A(f"v_mul_f32 {v(vL+2*qh+j)}, {v(vL+2*qh+j)}, {v(vT+2+qh)}")
    for dt in range(4):
        for qh in range(2):
            base = (dt*2+qh)*16
            for r0 in range(0, 16, 4):
                for r in range(4): A(f"v_accvgpr_read_b32 {v(vT+4+r)}, {a(base+r0+r)}")
                for r in range(4): A(f"v_mul_f32 {v(vT+4+r)}, {v(vT+4+r)}, {v(vT+2+qh)}")
                for r in range(4): A(f"v_accvgpr_write_b32 {a(base+r0+r)}, {v(vT+4+r)}")
    A("s_nop 1")
    A(f"s_setpc_b64 {s(sRet,2)}")
    A("L_k1_epi:")
    ST(30)
    DS(1)
    if fused:
        A("s_waitcnt vmcnt(0)")
        A(f"s_mov_b32 {s(sT2)}, {1 << 17}")
        A("L_k1_nonce_poll:")
        A(f"v_readfirstlane_b32 {s(sNonce)}, {v(vNon)}")
        A(f"s_cmp_lg_u32 {s(sNonce)}, 0\ns_cbranch_scc1 L_k1_nonce_ok")
        A(f"global_load_dword {v(vNon)}, {v(vNon+1)}, s[22:23] sc1\ns_waitcnt vmcnt(0)")
        A(f"s_sub_u32 {s(sT2)}, {s(sT2)}, 1\ns_cmp_lg_u32 {s(sT2)}, 0\ns_cbranch_scc1 L_k1_nonce_poll")
        A("L_k1_nonce_ok:")
    if stamp: A("s_memrealtime s[74:75]")
    A("s_waitcnt vmcnt(0)")
    MM = vT
    for qh in range(2):
        A(f"v_add_f32 {v(vL+2*qh)}, {v(vL+2*qh)}, {v(vL+2*qh+1)}")
        A(f"v_mov_b32 {v(vL+2*qh+1)}, {v(vL+2*qh)}")
    A("s_nop 1")
    for qh in range(2): A(f"v_permlane32_swap_b32 {v(vL+2*qh)}, {v(vL+2*qh+1)}")
    A("s_nop 1")
    for qh in range(2):
        A(f"v_add_f32 {v(MM+2+qh)}, {v(vL+2*qh)}, {v(vL+2*qh+1)}")
        A(f"v_mov_b32 {v(MM+qh)}, {v(vM+qh)}")
    A(f"v_lshlrev_b32 {v(vKa)}, 4, {L}")
    A(f"s_xor_b32 {s(sT0)}, {s(sRing)}, {2*RING}")
    A(f"v_add_u32 {v(vKa+1)}, {s(sT0)}, {v(vKa)}")
    A(f"v_add_u32 {v(vKa)}, {s(sRing)}, {v(vKa)}")
    A(f"ds_write_b128 {v(vKa)}, {v(MM,4)} offset:16384")
    A(f"v_bfe_u32 {v(vKa+2)}, {L}, 4, 1"); A(f"v_lshlrev_b32 {v(vKa+2)}, 10, {v(vKa+2)}")
    A(f"v_lshrrev_b32 {v(vKa+3)}, 5, {L}"); A(f"v_lshlrev_b32 {v(vKa+3)}, 8, {v(vKa+3)}")
    A(f"v_add_u32 {v(vKa+2)}, {v(vKa+2)}, {v(vKa+3)}")
    A(f"v_and_b32 {v(vKa+3)}, 15, {L}"); A(f"v_lshlrev_b32 {v(vKa+3)}, 4, {v(vKa+3)}")
    A(f"v_add_u32 {v(vKa+2)}, {v(vKa+2)}, {v(vKa+3)}")
    A(f"s_cmp_eq_u32 {s(sKH)}, 0")
    A("s_cbranch_scc0 L_k1_epi1")
    for kh in range(2):
        if kh == 1: A("L_k1_epi1:")
        keep = [2*kh, 2*kh+1]; send = [2*(1-kh), 2*(1-kh)+1]
        f = 0
        for dt in send:
            for qh in range(2):
                for rq in range(4):
                    A(f"ds_write_b128 {v(vKa)}, {a((dt*2+qh)*16+4*rq,4)} offset:{f*1024}"); f += 1
        A("s_waitcnt lgkmcnt(0)")
        A("s_barrier")
        A(f"ds_read_b128 {v(MM+4,4)}, {v(vKa+1)} offset:16384")
        for f in range(16): A(f"ds_read_b128 {v(vS+f*4,4)}, {v(vKa+1)} offset:{f*1024}")
        A("s_waitcnt lgkmcnt(15)")
        FS, FO = vP, vP + 2
        for qh in range(2):
            A(f"v_max_f32 {v(vP+4+qh)}, {v(MM+qh)}, {v(MM+4+qh)}")
        for qh in range(2):
            A(f"v_sub_f32 {v(FS+qh)}, {v(MM+qh)}, {v(vP+4+qh)}")
            A(f"v_sub_f32 {v(FO+qh)}, {v(MM+4+qh)}, {v(vP+4+qh)}")
        for qh in range(2):
            A(f"v_mul_f32 {v(FS+qh)}, {s(sC)}, {v(FS+qh)}")
            A(f"v_mul_f32 {v(FO+qh)}, {s(sC)}, {v(FO+qh)}")
        for qh in range(2):
            A(f"v_exp_f32 {v(FS+qh)}, {v(FS+qh)}")
            A(f"v_exp_f32 {v(FO+qh)}, {v(FO+qh)}")
        A("s_nop 0")
        for qh in range(2):
            A(f"v_mul_f32 {v(vP+4+qh)}, {v(MM+2+qh)}, {v(FS+qh)}")
            A(f"v_fma_f32 {v(vP+4+qh)}, {v(MM+6+qh)}, {v(FO+qh)}, {v(vP+4+qh)}")
        for qh in range(2): A(f"v_rcp_f32 {v(vP+4+qh)}, {v(vP+4+qh)}")
        A("s_nop 0")
        for qh in range(2):
            A(f"v_mul_f32 {v(FS+qh)}, {v(FS+qh)}, {v(vP+4+qh)}")
            A(f"v_mul_f32 {v(FO+qh)}, {v(FO+qh)}, {v(vP+4+qh)}")
        A("s_waitcnt lgkmcnt(0)")
        for dl, dt in enumerate(keep):
            A(f"s_mov_b32 {s(sT0)}, {dt*4096}")
            for qh in range(2):
                oth = vS + (dl*2+qh)*16
                own = (dt*2+qh)*16
                tmp = vVF + qh*16
                for r in range(16): A(f"v_accvgpr_read_b32 {v(tmp+r)}, {a(own+r)}")
                for r in range(16): A(f"v_mul_f32 {v(oth+r)}, {v(oth+r)}, {v(FO+qh)}")
                for r in range(16): A(f"v_fma_f32 {v(oth+r)}, {v(tmp+r)}, {v(FS+qh)}, {v(oth+r)}")
                for m in range(2):
                    dst = vQ + ((dl*2+qh)*2+m)*4
                    for j in range(4): A(f"v_cvt_pk_bf16_f32 {v(dst+j)}, {v(oth+8*m+2*j)}, {v(oth+8*m+2*j+1)}")
                    A(f"buffer_store_dwordx4 {v(dst,4)}, {v(vKa+2)}, {s(sO,4)}, {s(sT0)} offen offset:{qh*2048+m*512} {'sc1' if fused else opt.get('oflag','')}")
        A("s_branch L_k1_fin")
    A("L_k1_fin:")
    if fused:
        from tail import emit_tail
        emit_tail(A, dict(sWv=sWv, sB=sB, sH0=sH0, sType=sType, sNonce=sNonce), opt, VQ, ST, DS)
        if dst:
            A("s_waitcnt vmcnt(0)")
            DS(5)
            A("s_waitcnt lgkmcnt(0)")
            A(f"s_cmp_lg_u32 {s(sWv)}, 0\ns_cbranch_scc1 L_dst_skip")
            A("s_mov_b64 exec, 1")
            for i in range(6):
                A(f"s_sub_u32 {s(sT0)}, s{84+2*i}, {s(sNonce)}\nv_mov_b32 v2, {s(sT0)}\nv_mov_b32 v3, {4+4*i}")
                A("global_atomic_umax v3, v2, s[22:23]")
            A("s_waitcnt vmcnt(0)")
            A("L_dst_skip:")
    ST(31)
    if fst:
        A(f"s_lshl_b32 {s(sT0)}, s2, 2"); A(f"s_add_u32 {s(sT0)}, {s(sT0)}, {s(sWv)}"); A(f"s_lshl_b32 {s(sT0)}, {s(sT0)}, 8")
        A(f"s_add_u32 {s(sT0)}, {s(sT0)}, 0x2200000")
        A(f"v_lshlrev_b32 v5, 2, {L}\nv_add_u32 v5, {s(sT0)}, v5")
        A("global_store_dword v5, v250, s[20:21]")
    if stamp:
        A("s_waitcnt vmcnt(0)")
        A("s_memrealtime s[76:77]")
        A("s_waitcnt lgkmcnt(0)")
        A(f"s_lshl_b32 {s(sT0)}, s2, 2"); A(f"s_add_u32 {s(sT0)}, {s(sT0)}, {s(sWv)}"); A(f"s_lshl_b32 {s(sT0)}, {s(sT0)}, 4")
        A(f"s_add_u32 {s(sT0)}, {s(sT0)}, 0x2000000")
        A(f"v_mov_b32 v8, s70\nv_mov_b32 v9, s72\nv_mov_b32 v10, s74\nv_mov_b32 v11, s76\nv_mov_b32 v5, {s(sT0)}")
        A(f"v_cmp_eq_u32 vcc, 0, {L}\ns_and_saveexec_b64 s[80:81], vcc")
        A("global_store_dwordx4 v5, v[8:11], s[20:21]")
    A("L_k1_done:")
    A("s_endpgm")
    return A.text(), kd(name, 512, 102, 256)
```

```python
from asmlib import *
OBUF = 0x0
PART = 0x1000000
FLAG1 = 0x3000000
FLAG2 = 0x3010000
SPIN = 1 << 17

def emit_tail(A, R, opt, VQ, ST, DS):
    sWv, sB, sH0, sType, sNonce = R["sWv"], R["sB"], R["sH0"], R["sType"], R["sNonce"]
    wflag = opt.get("woflag", "nt")
    vL, vT = 1, 2
    vWd, vWa, vOl, vAF, vAcc, vOF = 10, 19, 20, 24, 48, 120
    sW, sO, sP = 24, 28, 32
    sJ, sMT, sN4 = 36, 37, 38
    sT0, sT1, sT2, sT3 = 50, 51, 52, 53
    L = v(vL); T0, T1, T2, T3 = (v(vT+i) for i in range(4))
    Q = VQ(A)
    for i in range(8): Q.issue("ostore")
    A("s_load_dwordx2 s[4:5], s[0:1], 32\ns_load_dwordx2 s[6:7], s[0:1], 72\ns_load_dwordx2 s[8:9], s[0:1], 80")
    A(f"s_and_b32 {s(sJ)}, s2, 7\ns_lshr_b32 {s(sMT)}, {s(sB)}, 1")
    A(f"s_and_b32 {s(sT0)}, {s(sB)}, 1\ns_lshl_b32 {s(sT0)}, {s(sT0)}, 1\ns_bfe_u32 {s(sT1)}, {s(sH0)}, 0x10001\ns_add_u32 {s(sN4)}, {s(sT0)}, {s(sT1)}")
    for i in range(9):
        A(f"v_add_u32 {T0}, {i*64}, {L}")
        A(f"v_mul_u32_u24 {T1}, 3641, {T0}\nv_lshrrev_b32 {T1}, 16, {T1}")
        A(f"v_mul_u32_u24 {T2}, 18, {T1}\nv_sub_u32 {T2}, {T0}, {T2}")
        A(f"v_mul_u32_u24 {T1}, 1152, {T1}\nv_lshlrev_b32 {T2}, 4, {T2}\nv_add_u32 {v(vWd+i)}, {T1}, {T2}")
    A(f"v_lshlrev_b32 {v(vOl)}, 4, {L}")
    A("s_waitcnt lgkmcnt(0)")
    A(f"s_cmp_eq_u32 {s(sType)}, 0\ns_cselect_b32 s4, s4, s6\ns_cselect_b32 s5, s5, s7")
    A(f"s_mul_i32 {s(sT0)}, {s(sJ)}, {512*1152}\ns_mul_i32 {s(sT1)}, {s(sN4)}, 288\ns_add_u32 {s(sT0)}, {s(sT0)}, {s(sT1)}")
    A(f"s_add_u32 {s(sW)}, s4, {s(sT0)}\ns_addc_u32 {s(sW+1)}, s5, 0\ns_and_b32 {s(sW+1)}, {s(sW+1)}, 0xffff")
    A(f"s_sub_u32 {s(sW+2)}, 4718592, {s(sT0)}\ns_mov_b32 {s(sW+3)}, 0x20000")
    A("s_barrier")
    sRot = 39
    A(f"s_add_u32 {s(sRot)}, {s(sMT)}, {s(sN4)}\ns_and_b32 {s(sRot)}, {s(sRot)}, 3\ns_lshl_b32 {s(sRot)}, {s(sRot)}, 2")
    for g in range(4):
        A(f"s_add_u32 {s(sT2)}, {s(sRot)}, {4*g}\ns_add_u32 {s(sT2)}, {s(sT2)}, {s(sWv)}\ns_and_b32 {s(sT2)}, {s(sT2)}, 15")
        A(f"s_mul_i32 {s(sT0)}, {s(sT2)}, 36864\ns_mul_i32 {s(sT1)}, {s(sWv)}, 9216\ns_add_u32 {s(sT1)}, {s(sT1)}, {4*g*9216}")
        for i in range(9):
            A(f"s_add_u32 m0, {s(sT1)}, {i*1024}")
            A("s_nop 0")
            A(f"buffer_load_dwordx4 {v(vWd+i)}, {s(sW,4)}, {s(sT0)} offen {wflag} lds"); Q.issue("wo")
    A(f"s_lshl_b32 {s(sT0)}, {s(sJ)}, 1\ns_add_u32 {s(sT0)}, {s(sT0)}, {s(sType)}")
    A(f"s_lshl_b32 {s(sT1)}, {s(sT0)}, 3\ns_lshl_b32 {s(sT2)}, {s(sMT)}, 1\ns_add_u32 {s(sT1)}, {s(sT1)}, {s(sT2)}")
    A(f"s_lshr_b32 {s(sT2)}, {s(sWv)}, 1\ns_add_u32 {s(sT1)}, {s(sT1)}, {s(sT2)}\ns_lshl_b32 {s(sT1)}, {s(sT1)}, 16")
    A(f"s_and_b32 {s(sT2)}, {s(sWv)}, 1\ns_lshl_b32 {s(sT2)}, {s(sT2)}, 11\ns_add_u32 {s(sT1)}, {s(sT1)}, {s(sT2)}")
    A(f"s_add_u32 {s(sO)}, s20, {s(sT1)}\ns_addc_u32 {s(sO+1)}, s21, 0\ns_and_b32 {s(sO+1)}, {s(sO+1)}, 0xffff")
    A(f"s_mov_b32 {s(sO+2)}, 0x10000\ns_mov_b32 {s(sO+3)}, 0x20000")
    A(f"s_lshl_b32 {s(sT0)}, {s(sT0)}, 2\ns_add_u32 {s(sT0)}, {s(sT0)}, {s(sMT)}\ns_lshl_b32 {s(sT0)}, {s(sT0)}, 2\ns_add_u32 {s(sT0)}, {s(sT0)}, {s(sN4)}")
    A(f"s_lshl_b32 {s(sT0)}, {s(sT0)}, 2\ns_add_u32 {s(sT0)}, {s(sT0)}, {s(sWv)}\ns_mul_i32 {s(sT0)}, {s(sT0)}, 9216\ns_add_u32 {s(sT0)}, {s(sT0)}, {PART}")
    A(f"s_add_u32 {s(sP)}, s20, {s(sT0)}\ns_addc_u32 {s(sP+1)}, s21, 0\ns_and_b32 {s(sP+1)}, {s(sP+1)}, 0xffff")
    A(f"s_mov_b32 {s(sP+2)}, 9216\ns_mov_b32 {s(sP+3)}, 0x20000")
    A(f"v_lshrrev_b32 {T0}, 5, {L}\nv_lshlrev_b32 {T0}, 4, {T0}\nv_bfe_u32 {T1}, {L}, 4, 1\nv_lshlrev_b32 {T1}, 2, {T1}\nv_add_u32 {T0}, {T0}, {T1}")
    A(f"v_bfe_u32 {T1}, {L}, 2, 2\nv_add_u32 {T0}, {T0}, {T1}\nv_mul_u32_u24 {T0}, 288, {T0}\nv_and_b32 {T1}, 3, {L}\nv_lshlrev_b32 {T1}, 3, {T1}\nv_add_u32 {v(vWa)}, {T0}, {T1}")
    A(f"v_add_u32 {v(vWa+2)}, 0x10000, {v(vWa)}\nv_add_u32 {v(vWa+3)}, 0x20000, {v(vWa)}")
    for i in range(72): A(f"v_mov_b32 {v(vAcc+i)}, 0")
    def handoff(tag, n, flagoff_code):
        A("s_barrier")
        A(f"s_cmp_lg_u32 {s(sWv)}, 0\ns_cbranch_scc1 L_{tag}_skip")
        flagoff_code()
        A(f"s_lshl_b32 {s(sT1)}, {s(sT1)}, 2\ns_add_u32 {s(sT1)}, {s(sT1)}, {s(sT0)}")
        A(f"v_mov_b32 {T0}, {s(sT1)}\nv_mov_b32 {T1}, {s(sNonce)}")
        A(f"s_mov_b64 s[40:41], exec\ns_mov_b64 exec, 1")
        A(f"global_store_dword {T0}, {T1}, s[20:21] sc1")
        A("s_mov_b64 exec, s[40:41]")
        A(f"v_and_b32 {T2}, {n-1}, {L}\nv_lshlrev_b32 {T2}, 2, {T2}\nv_add_u32 {T2}, {s(sT0)}, {T2}")
        A(f"s_mov_b32 {s(sT2)}, {SPIN}")
        A(f"L_{tag}_poll:")
        A(f"global_load_dword {T3}, {T2}, s[20:21] sc1")
        A("s_waitcnt vmcnt(0)")
        A(f"v_cmp_ne_u32 vcc, {s(sNonce)}, {T3}")
        A(f"s_cbranch_vccz L_{tag}_skip")
        A(f"s_sleep 1\ns_sub_u32 {s(sT2)}, {s(sT2)}, 1\ns_cmp_lg_u32 {s(sT2)}, 0\ns_cbranch_scc1 L_{tag}_poll")
        A(f"L_{tag}_skip:")
        A("s_barrier")
    ST(11)
    Q.wait("ostore")
    ST(12)
    def f1():
        A(f"s_lshl_b32 {s(sT0)}, {s(sJ)}, 1\ns_add_u32 {s(sT0)}, {s(sT0)}, {s(sType)}\ns_lshl_b32 {s(sT0)}, {s(sT0)}, 2\ns_add_u32 {s(sT0)}, {s(sT0)}, {s(sMT)}")
        A(f"s_lshl_b32 {s(sT0)}, {s(sT0)}, 7\ns_add_u32 {s(sT0)}, {s(sT0)}, {FLAG1}\ns_mov_b32 {s(sT1)}, {s(sN4)}")
    handoff("h1", 4, f1)
    ST(13)
    DS(2)
    for st in range(16):
        A(f"s_add_u32 {s(sT0)}, {s(sRot)}, {st}\ns_and_b32 {s(sT0)}, {s(sT0)}, 15\ns_lshl_b32 {s(sT0)}, {s(sT0)}, 12")
        for blk in range(2):
            A(f"buffer_load_dwordx4 {v(vOF+(st*2+blk)*4,4)}, {v(vOl)}, {s(sO,4)}, {s(sT0)} offen offset:{blk*1024} sc1"); Q.issue(f"o{st}")
    Q.wait("wo")
    A("s_barrier")
    def wa(off):
        if off < 0x10000: return v(vWa), off
        if off < 0x20000: return v(vWa+2), off - 0x10000
        return v(vWa+3), off - 0x20000
    NB = 5
    seq = [(st, nt) for st in range(16) for nt in range(9)]
    def rd(idx):
        st, nt = seq[idx]; buf = vAF + (idx % NB) * 4
        for u in range(2):
            reg, imm = wa(st*9216 + u*8*288 + nt*32)
            A(f"ds_read_b64_tr_b16 {v(buf+u*2,2)}, {reg} offset:{imm}")
    for i in range(NB - 1): rd(i)
    for idx, (st, nt) in enumerate(seq):
        if nt == 0: Q.wait(f"o{st}")
        left = min(len(seq) - 1 - idx, NB - 2)
        A(f"s_waitcnt lgkmcnt({2*left})")
        buf = vAF + (idx % NB) * 4
        for blk in range(2):
            acc = v(vAcc + (nt*2+blk)*4, 4)
            A(f"v_mfma_f32_16x16x32_bf16 {acc}, {v(buf,4)}, {v(vOF+(st*2+blk)*4,4)}, {acc}")
        if idx + NB - 1 < len(seq): rd(idx + NB - 1)
    A("s_nop 7")
    ST(14)
    DS(3)
    for nt in range(9):
        b = vAcc + nt*8
        for blk in range(2):
            A(f"v_cvt_pk_bf16_f32 {v(vOF+nt*4+blk*2)}, {v(b+blk*4)}, {v(b+blk*4+1)}")
            A(f"v_cvt_pk_bf16_f32 {v(vOF+nt*4+blk*2+1)}, {v(b+blk*4+2)}, {v(b+blk*4+3)}")
        A(f"s_mov_b32 {s(sT0)}, {nt*1024}")
        A(f"buffer_store_dwordx4 {v(vOF+nt*4,4)}, {v(vOl)}, {s(sP,4)}, {s(sT0)} offen sc1")
    A(f"s_lshl_b32 {s(sT0)}, {s(sType)}, 2\ns_add_u32 {s(sT0)}, {s(sT0)}, {s(sMT)}\ns_lshl_b32 {s(sT0)}, {s(sT0)}, 2\ns_add_u32 {s(sT0)}, {s(sT0)}, {s(sN4)}")
    A(f"s_mul_i32 {s(sT0)}, {s(sT0)}, 36864\ns_add_u32 {s(sT0)}, {s(sT0)}, {PART}")
    A(f"s_add_u32 {s(sO)}, s20, {s(sT0)}\ns_addc_u32 {s(sO+1)}, s21, 0\ns_and_b32 {s(sO+1)}, {s(sO+1)}, 0xffff")
    A(f"s_mov_b32 {s(sO+2)}, {7*1179648 + 36864}\ns_mov_b32 {s(sO+3)}, 0x20000")
    A(f"s_mov_b32 {s(sW)}, s8\ns_and_b32 {s(sW+1)}, s9, 0xffff\ns_mov_b32 {s(sW+2)}, 1179648\ns_mov_b32 {s(sW+3)}, 0x20000")
    A(f"s_mul_i32 s42, {s(sMT)}, {128*2304}\ns_mul_i32 {s(sT1)}, {s(sType)}, 1152\ns_add_u32 s42, s42, {s(sT1)}\ns_mul_i32 {s(sT1)}, {s(sN4)}, 288\ns_add_u32 s42, s42, {s(sT1)}")
    vSl, vOa = 24, 28
    for i in range(3):
        A(f"s_mul_i32 {s(sT0)}, {s(sJ)}, 576\ns_lshl_b32 {s(sT1)}, {s(sWv)}, 6\ns_add_u32 {s(sT0)}, {s(sT0)}, {s(sT1)}")
        if i < 2: A(f"s_add_u32 {s(sT0)}, {s(sT0)}, {i*256}")
        else: A(f"s_mul_i32 {s(sT0)}, {s(sJ)}, 576\ns_add_u32 {s(sT0)}, {s(sT0)}, 512")
        A(f"v_add_u32 {T0}, {s(sT0)}, {L}")
        A(f"v_lshlrev_b32 {v(vSl+i)}, 3, {T0}")
        A(f"v_lshrrev_b32 {T1}, 7, {T0}")
        A(f"v_mul_u32_u24 {T2}, 7282, {T1}\nv_lshrrev_b32 {T2}, 16, {T2}")
        A(f"v_mul_u32_u24 {T3}, 9, {T2}\nv_sub_u32 {T1}, {T1}, {T3}")
        A(f"v_lshlrev_b32 {T1}, 5, {T1}")
        A(f"v_lshlrev_b32 {T2}, 5, {T2}")
        A(f"v_and_b32 {T3}, 1, {T0}\nv_lshlrev_b32 {T3}, 4, {T3}\nv_add_u32 {T2}, {T2}, {T3}")
        A(f"v_bfe_u32 {T3}, {T0}, 1, 4\nv_add_u32 {T2}, {T2}, {T3}")
        A(f"v_mul_u32_u24 {T2}, 2304, {T2}\nv_add_u32 {T1}, {T1}, {T2}")
        A(f"v_bfe_u32 {T3}, {T0}, 5, 2\nv_lshlrev_b32 {T3}, 3, {T3}\nv_add_u32 {v(vOa+i)}, {T1}, {T3}")
    A("s_waitcnt vmcnt(0)")
    ST(15)
    def f2():
        A(f"s_lshl_b32 {s(sT0)}, {s(sType)}, 2\ns_add_u32 {s(sT0)}, {s(sT0)}, {s(sMT)}\ns_lshl_b32 {s(sT0)}, {s(sT0)}, 2\ns_add_u32 {s(sT0)}, {s(sT0)}, {s(sN4)}")
        A(f"s_lshl_b32 {s(sT0)}, {s(sT0)}, 7\ns_add_u32 {s(sT0)}, {s(sT0)}, {FLAG2}\ns_mov_b32 {s(sT1)}, {s(sJ)}")
    handoff("h2", 8, f2)
    ST(16)
    DS(4)
    def group(i):
        base = 32 + i*16
        for jj in range(8):
            A(f"s_mov_b32 {s(sT0)}, {jj*1179648}")
            A(f"buffer_load_dwordx2 {v(base+2*jj,2)}, {v(vSl+i)}, {s(sO,4)}, {s(sT0)} offen sc1")
    def reduce(i, later):
        base = 32 + i*16; acc = 84
        for r in range(4): A(f"v_mov_b32 {v(acc+r)}, 0")
        for jj in range(8):
            A(f"s_waitcnt vmcnt({later + 7 - jj})")
            for d in range(2):
                src = base + 2*jj + d
                A(f"v_lshlrev_b32 {v(acc+4)}, 16, {v(src)}\nv_and_b32 {v(acc+5)}, 0xffff0000, {v(src)}")
                A(f"v_add_f32 {v(acc+2*d)}, {v(acc+2*d)}, {v(acc+4)}\nv_add_f32 {v(acc+2*d+1)}, {v(acc+2*d+1)}, {v(acc+5)}")
        A(f"v_cvt_pk_bf16_f32 {v(acc+6+2*i)}, {v(acc)}, {v(acc+1)}\nv_cvt_pk_bf16_f32 {v(acc+7+2*i)}, {v(acc+2)}, {v(acc+3)}")
    A(f"s_cmp_eq_u32 {s(sWv)}, 0\ns_cbranch_scc1 L_red3")
    group(0); group(1)
    reduce(0, 8); reduce(1, 0)
    for i in range(2): A(f"buffer_store_dwordx2 {v(90+2*i,2)}, {v(vOa+i)}, {s(sW,4)}, s42 offen")
    A("s_branch L_red_done")
    A("L_red3:")
    group(0); group(1); group(2)
    reduce(0, 16); reduce(1, 8); reduce(2, 0)
    for i in range(3): A(f"buffer_store_dwordx2 {v(90+2*i,2)}, {v(vOa+i)}, {s(sW,4)}, s42 offen")
    A("L_red_done:")
```

```python
from asmlib import *
import math

LOG2E = 1.4426950408889634
QSCALE = LOG2E / math.sqrt(128.0)
def f2u(x):
    import struct
    return struct.unpack("<I", struct.pack("<f", x))[0]

RING = 32768
KA, VA, KB, VB = 0, 8192, 16384, 24576
EXTRA = 131072
vTID, vLANE = 0, 1
vDMA = 2
vKa = 6
vVa = 14
vM = 22
vMT = 24
vL = 26
vT = 30
vNM = 38
vNon = 216
vQ = 40
vS = 104
vKF = 136
vVF = 168
vP = 200
NV = 216
vQacc = 104
vWF2 = 40
vWdma = 200
vXdma = 204
vWa = 205
vXa = 207
sK, sV, sX, sW, sO = 24, 28, 32, 36, 40
sWv, sHH, sKH, sRing, sKoff, sCnt = 44, 45, 46, 47, 48, 49
sT0, sT1, sT2, sT3 = 50, 51, 52, 53
sRot, sB, sH0, sType = 54, 55, 56, 57
sTile = 58
sXw, sXl = 59, 60
sC = 61
sNonce = 62
sM0, sM1 = 64, 66
sRet = 68

class VQ:
    def __init__(self, A): self.q = []; self.A = A
    def issue(self, tag): self.q.append(tag)
    def wait(self, *tags):
        idx = [i for i, t in enumerate(self.q) if t in tags]
        if not idx: return
        last = max(idx)
        n = len(self.q) - 1 - last
        assert n <= 63, n
        self.A(f"s_waitcnt vmcnt({n})")
        self.q = self.q[last + 1:]
    def wait_all(self):
        self.A("s_waitcnt vmcnt(0)"); self.q = []

def gen_k1(name, opt):
    A = Asm()
    fine = opt.get("fine", True)
    kvflag = opt.get("kvflag", "nt")
    wflag = opt.get("wflag", "nt"); xflag = opt.get("xflag", "")
    k0_k = opt.get("k0_k", 23); v0_k = opt.get("v0_k", 27)
    THR = opt.get("thr", 8.0)
    dbg = opt.get("dbg", None)
    stamp = opt.get("stamp", False)
    dbgst = opt.get("dbgstamp", False)
    def DS(i):
        if dbgst: A(f"s_memrealtime s[{84+2*i}:{85+2*i}]")
    fst = opt.get("fstamp", False)
    def ST(i):
        if fst and (fst is True or i in fst):
            A("s_memrealtime s[80:81]\ns_memtime s[82:83]\ns_waitcnt lgkmcnt(0)"); A(f"v_writelane_b32 v250, s80, {i}"); A(f"v_writelane_b32 v250, s82, {i+32}")
    A(f".globl {name}\n.p2align 8\n.type {name},@function\n{name}:")
    A(f"s_cmp_ge_u32 s2, 256\ns_cbranch_scc1 L_k1_done")
    if stamp: A("s_memrealtime s[70:71]")
    A("s_load_dwordx8 s[4:11], s[0:1], 0")
    A("s_load_dwordx8 s[12:19], s[0:1], 40")
    A("s_load_dwordx2 s[20:21], s[0:1], 96")
    A("s_load_dwordx2 s[22:23], s[0:1], 88")
    if opt.get("fused"):
        A("s_load_dwordx2 s[96:97], s[0:1], 32\ns_load_dwordx2 s[98:99], s[0:1], 72")
    A(f"v_lshrrev_b32 {v(vT)}, 6, v0")
    A(f"v_and_b32 {v(vLANE)}, 63, v0")
    A(f"v_readfirstlane_b32 {s(sWv)}, {v(vT)}")
    A(f"s_and_b32 {s(sT0)}, s2, 7")
    A(f"s_lshr_b32 {s(sT1)}, s2, 3")
    A(f"s_and_b32 {s(sType)}, {s(sT1)}, 1")
    A(f"s_lshr_b32 {s(sT1)}, {s(sT1)}, 1")
    A(f"s_and_b32 {s(sT2)}, {s(sT1)}, 1")
    A(f"s_lshr_b32 {s(sB)}, {s(sT1)}, 1")
    A(f"s_lshl_b32 {s(sH0)}, {s(sT0)}, 2")
    A(f"s_lshl_b32 {s(sT3)}, {s(sT2)}, 1")
    A(f"s_add_u32 {s(sH0)}, {s(sH0)}, {s(sT3)}")
    A(f"s_lshl_b32 {s(sT3)}, {s(sT2)}, 2")
    A(f"s_add_u32 {s(sRot)}, {s(sB)}, {s(sT3)}")
    A(f"s_and_b32 {s(sRot)}, {s(sRot)}, 7")
    A(f"s_and_b32 {s(sHH)}, {s(sWv)}, 1")
    A(f"s_lshr_b32 {s(sKH)}, {s(sWv)}, 1")
    A(f"s_lshl_b32 {s(sRing)}, {s(sWv)}, 15")
    A("s_waitcnt lgkmcnt(0)")
    A(f"s_cmp_eq_u32 {s(sType)}, 0")
    for i in range(8): A(f"s_cselect_b32 {s(4+i)}, {s(4+i)}, {s(12+i)}")
    if opt.get("fused"):
        A("s_cselect_b32 s96, s96, s98\ns_cselect_b32 s97, s97, s99")
        A("s_and_b32 s97, s97, 0xffff\ns_mov_b32 s98, 4718592\ns_mov_b32 s99, 0x20000")
        A(f"s_and_b32 s100, s2, 7\ns_mul_i32 s100, s100, 589824\ns_lshr_b32 {s(sT0)}, s2, 4\ns_lshl_b32 {s(sT0)}, {s(sT0)}, 2\ns_add_u32 {s(sT0)}, {s(sT0)}, {s(sWv)}")
        A(f"s_mul_i32 {s(sT0)}, {s(sT0)}, 9216\ns_add_u32 s100, s100, {s(sT0)}")
    A(f"s_add_u32 {s(sT0)}, {s(sH0)}, {s(sHH)}")
    A(f"s_lshl_b32 {s(sT1)}, {s(sB)}, 5")
    A(f"s_add_u32 {s(sT1)}, {s(sT1)}, {s(sT0)}")
    A(f"s_lshr_b32 {s(sT2)}, {s(sH0)}, 1")
    A(f"s_lshl_b32 {s(sT3)}, {s(sB)}, 4")
    A(f"s_add_u32 {s(sT2)}, {s(sT2)}, {s(sT3)}")
    A(f"s_cmp_eq_u32 {s(sType)}, 0")
    A(f"s_cselect_b32 {s(sT2)}, {s(sT2)}, {s(sT1)}")
    A(f"s_lshl_b32 {s(sT2)}, {s(sT2)}, 18")
    for srd, p in ((sK, 6), (sV, 8)):
        A(f"s_add_u32 {s(srd)}, {s(p)}, {s(sT2)}")
        A(f"s_addc_u32 {s(srd+1)}, {s(p+1)}, 0")
        A(f"s_and_b32 {s(srd+1)}, {s(srd+1)}, 0xffff")
        A(f"s_mov_b32 {s(srd+2)}, 0x40000")
        A(f"s_mov_b32 {s(srd+3)}, 0x20000")
    fused = opt.get("fused", False)
    if fused:
        A(f"s_and_b32 {s(sT1)}, s2, 7\ns_lshl_b32 {s(sT1)}, {s(sT1)}, 1\ns_add_u32 {s(sT1)}, {s(sT1)}, {s(sType)}")
        A(f"s_lshl_b32 {s(sT1)}, {s(sT1)}, 3\ns_add_u32 {s(sT1)}, {s(sT1)}, {s(sB)}\ns_lshl_b32 {s(sT1)}, {s(sT1)}, 2")
        A(f"s_and_b32 {s(sT2)}, {s(sT0)}, 3\ns_add_u32 {s(sT1)}, {s(sT1)}, {s(sT2)}")
    else:
        A(f"s_lshl_b32 {s(sT2)}, {s(sType)}, 8")
        A(f"s_add_u32 {s(sT1)}, {s(sT1)}, {s(sT2)}")
    A(f"s_lshl_b32 {s(sT1)}, {s(sT1)}, 14")
    A(f"s_add_u32 {s(sO)}, s20, {s(sT1)}")
    A(f"s_addc_u32 {s(sO+1)}, s21, 0")
    A(f"s_and_b32 {s(sO+1)}, {s(sO+1)}, 0xffff")
    A(f"s_mov_b32 {s(sO+2)}, 16384")
    A(f"s_mov_b32 {s(sO+3)}, 0x20000")
    A(f"s_mul_i32 {s(sT1)}, {s(sB)}, 73728")
    A(f"s_add_u32 {s(sX)}, s4, {s(sT1)}")
    A(f"s_addc_u32 {s(sX+1)}, s5, 0")
    A(f"s_and_b32 {s(sX+1)}, {s(sX+1)}, 0xffff")
    A(f"s_mov_b32 {s(sX+2)}, 73728")
    A(f"s_mov_b32 {s(sX+3)}, 0x20000")
    A(f"s_lshl_b32 {s(sT1)}, {s(sT0)}, 8")
    A(f"s_lshl_b32 {s(sT2)}, {s(sKH)}, 7")
    A(f"s_add_u32 {s(sT1)}, {s(sT1)}, {s(sT2)}")
    A(f"s_add_u32 {s(sW)}, s10, {s(sT1)}")
    A(f"s_addc_u32 {s(sW+1)}, s11, 0")
    A(f"s_and_b32 {s(sW+1)}, {s(sW+1)}, 0xffff")
    A(f"s_sub_u32 {s(sW+2)}, 4718592, {s(sT1)}")
    A(f"s_mov_b32 {s(sW+3)}, 0x20000")
    L = v(vLANE); T0, T1, T2, T3 = (v(vT + i) for i in range(4))
    A(f"v_lshrrev_b32 {T0}, 4, {L}")
    A(f"s_lshl_b32 {s(sT1)}, {s(sHH)}, 2")
    A(f"v_or_b32 {T0}, {s(sT1)}, {T0}")
    A(f"v_and_b32 {T1}, 7, {L}")
    A(f"v_xor_b32 {T0}, {T0}, {T1}")
    A(f"v_lshlrev_b32 {T0}, 4, {T0}")
    A(f"v_lshrrev_b32 {T1}, 3, {L}")
    A(f"v_mul_u32_u24 {T2}, 1152, {T1}")
    A(f"v_add_u32 {v(vXdma)}, {T0}, {T2}")
    A(f"v_lshrrev_b32 {T0}, 4, {L}")
    A(f"v_and_b32 {T0}, 1, {T0}")
    A(f"v_lshlrev_b32 {T0}, 2, {T0}")
    A(f"v_and_b32 {T2}, 7, {L}")
    A(f"v_xor_b32 {T0}, {T0}, {T2}")
    A(f"v_lshlrev_b32 {T0}, 4, {T0}")
    A(f"v_lshlrev_b32 {T1}, 13, {T1}")
    A(f"v_add_u32 {v(vWdma)}, {T0}, {T1}")
    for n in range(1, 4): A(f"v_add_u32 {v(vWdma+n)}, {n*64512}, {v(vWdma)}")
    Q = VQ(A)
    if fused:
        A(f"s_or_b32 {s(sT0)}, s2, {s(sWv)}\ns_cmp_eq_u32 {s(sT0)}, 0\ns_cbranch_scc0 L_k1_nonce_done")
        A(f"s_memrealtime s[62:63]\ns_waitcnt lgkmcnt(0)\ns_or_b32 s62, s62, 1")
        A(f"v_mov_b32 {T0}, s62\nv_mov_b32 {T1}, 0")
        A(f"s_mov_b64 s[62:63], exec\ns_mov_b64 exec, 1")
        A(f"global_store_dword {T1}, {T0}, s[22:23] sc1")
        A("s_mov_b64 exec, s[62:63]")
        A("L_k1_nonce_done:")
    if fst: A("v_mov_b32 v250, 0")
    ST(0)
    XSLOT = [EXTRA + (i & 3)*8192 for i in range(9)]
    sWo = 4
    sTa, sTb = 13, 14
    def x_items(t):
        out = [("s", f"s_lshr_b32 {s(sTa)}, {s(sWo+t)}, 12"), ("s", f"s_add_u32 {s(sTa)}, {s(sTa)}, {s(sXw)}"),
               ("s", f"s_add_u32 m0, {s(sXl)}, {XSLOT[t]}"), ("s", f"s_add_u32 {s(sTb)}, {s(sTa)}, {4*9216}"),
               ("d", f"buffer_load_dwordx4 {v(vXdma)}, {s(sX,4)}, {s(sTa)} offen {xflag} lds", f"x{t}"),
               ("s", f"s_add_u32 m0, {s(sXl)}, {XSLOT[t] + 4096}"), ("s", "s_nop 0"),
               ("d", f"buffer_load_dwordx4 {v(vXdma)}, {s(sX,4)}, {s(sTb)} offen {xflag} lds", f"x{t}")]
        return out
    def emit_items(items):
        for it in items:
            A(it[1])
            if it[0] == "d": Q.issue(it[2])
    def issue_x(t): emit_items(x_items(t))
    WPOS = {0: KB, 1: KB+4096, 2: VB, 3: VB+4096, 4: KA, 5: KA+4096, 6: VA, 7: VA+4096, 8: KB, 9: KB+4096,
            10: KA, 11: KA+4096, 12: VA, 13: VA+4096, 14: VB, 15: VB+4096, 16: KB, 17: KB+4096}
    WISSUE = {4: 0, 5: 1, 6: 2, 7: 3, 8: 4, 9: 5, 14: 6, 15: 7, 10: 9, 11: 11, 12: 13, 13: 15, 16: 17, 17: 19}
    def w_items(hs):
        t = hs >> 1
        out = [("s", f"s_add_u32 m0, {s(sRing)}, {WPOS[hs]}")]
        if hs & 1: out.append(("s", f"s_add_u32 {s(sTa)}, {s(sWo+t)}, {32*8192}")); so = sTa
        else: out.append(("s", "s_nop 0")); so = sWo + t
        for n in range(4):
            out.append(("d", f"buffer_load_dwordx4 {v(vWdma+n)}, {s(sW,4)}, {s(so)} offen offset:{n*1024} {wflag} lds", f"w{hs}"))
        return out
    def issue_w(hs): emit_items(w_items(hs))
    def kv_items(srd, slot, tag):
        hs = 8192 if fine else 4096
        out = []
        for half in range(2):
            out.append(("s", f"s_add_u32 m0, {s(sRing)}, {slot + half*4096}"))
            out.append(("s", f"s_add_u32 {s(sT0)}, {s(sKoff)}, {half*hs}"))
            for n in range(4):
                out.append(("d", f"buffer_load_dwordx4 {v(vDMA+n)}, {s(srd,4)}, {s(sT0)} offen offset:{n*1024} {kvflag} lds", tag))
        return out
    def issue_kv(srd, slot, tag, q=None):
        hs = 8192 if fine else 4096
        for half in range(2):
            A(f"s_add_u32 m0, {s(sRing)}, {slot + half*4096}")
            A(f"s_add_u32 {s(sT0)}, {s(sKoff)}, {half*hs}")
            for n in range(4):
                A(f"buffer_load_dwordx4 {v(vDMA+n)}, {s(srd,4)}, {s(sT0)} offen offset:{n*1024} {kvflag} lds")
                if q is not None: q.issue(tag)
    A(f"s_mov_b32 {s(sC)}, {f2u(QSCALE):#x}")
    A(f"s_mul_i32 {s(sXw)}, {s(sWv)}, 9216")
    A(f"s_lshl_b32 {s(sXl)}, {s(sWv)}, 10")
    for t in range(9):
        A(f"s_add_u32 {s(sWo+t)}, {s(sRot)}, {t}\ns_cmp_ge_u32 {s(sWo+t)}, 9\ns_cselect_b32 {s(sT3)}, 9, 0\ns_sub_u32 {s(sWo+t)}, {s(sWo+t)}, {s(sT3)}\ns_lshl_b32 {s(sWo+t)}, {s(sWo+t)}, 19")
        if t == 0: issue_x(0); issue_w(0); issue_w(1)
    ST(20)
    A(f"v_lshrrev_b32 {T0}, 4, {L}")
    A(f"v_lshlrev_b32 {T1}, 2, {T0}")
    A(f"v_and_b32 {T2}, 15, {L}")
    A(f"v_xor_b32 {T1}, {T1}, {T2}")
    A(f"v_lshlrev_b32 {T0}, 8, {T0}")
    for n in range(4):
        A(f"v_xor_b32 {T2}, {n}, {T1}")
        A(f"v_lshlrev_b32 {T2}, 4, {T2}")
        A(f"v_add_u32 {v(vDMA+n)}, {T0}, {T2}")
        if fine and n: A(f"v_add_u32 {v(vDMA+n)}, {n*1024}, {v(vDMA+n)}")
    A(f"s_lshl_b32 {s(sKoff)}, {s(sKH)}, {10 if fine else 13}")
    A(f"v_and_b32 {T0}, 31, {L}")
    A(f"v_and_b32 {T1}, 3, {T0}")
    A(f"v_lshlrev_b32 {T1}, 2, {T1}")
    A(f"v_bfe_u32 {T2}, {T0}, 2, 2")
    A(f"v_or_b32 {T1}, {T1}, {T2}")
    A(f"v_lshrrev_b32 {T2}, 5, {L}")
    A(f"v_xor_b32 {T1}, {T1}, {T2}")
    A(f"v_lshlrev_b32 {T1}, 4, {T1}")
    A(f"v_lshlrev_b32 {T0}, 8, {T0}")
    A(f"v_add_u32 {T0}, {T0}, {T1}")
    A(f"v_add_u32 {v(vKa)}, {s(sRing)}, {T0}")
    for kk in range(1, 8): A(f"v_xor_b32 {v(vKa+kk)}, {kk<<5}, {v(vKa)}")
    A(f"v_bfe_u32 {T0}, {L}, 4, 1")
    A(f"v_lshlrev_b32 {T0}, 1, {T0}")
    A(f"v_bfe_u32 {T1}, {L}, 1, 1")
    A(f"v_or_b32 {T0}, {T0}, {T1}")
    A(f"v_bfe_u32 {T1}, {L}, 2, 2")
    A(f"v_lshlrev_b32 {T2}, 2, {T1}")
    A(f"v_xor_b32 {T0}, {T0}, {T2}")
    A(f"v_lshrrev_b32 {T2}, 5, {L}")
    A(f"v_xor_b32 {T0}, {T0}, {T2}")
    A(f"v_lshlrev_b32 {T0}, 4, {T0}")
    A(f"v_lshlrev_b32 {T2}, 2, {T2}")
    A(f"v_add_u32 {T1}, {T1}, {T2}")
    A(f"v_lshlrev_b32 {T1}, 8, {T1}")
    A(f"v_add_u32 {T0}, {T0}, {T1}")
    A(f"v_and_b32 {T1}, 1, {L}")
    A(f"v_lshlrev_b32 {T1}, 3, {T1}")
    A(f"v_add_u32 {T0}, {T0}, {T1}")
    A(f"v_add_u32 {T0}, {s(sRing)}, {T0}")
    for dt in range(4):
        for u in range(2):
            A(f"v_xor_b32 {v(vVa+dt*2+u)}, {(dt<<6)|(u<<5)}, {T0}")
            if u: A(f"v_add_u32 {v(vVa+dt*2+u)}, 2048, {v(vVa+dt*2+u)}")
    A(f"v_bfe_u32 {T0}, {L}, 4, 1")
    A(f"v_lshlrev_b32 {T0}, 1, {T0}")
    A(f"v_and_b32 {T1}, 1, {L}")
    A(f"v_or_b32 {T0}, {T0}, {T1}")
    A(f"v_bfe_u32 {T1}, {L}, 3, 1")
    A(f"v_lshlrev_b32 {T1}, 2, {T1}")
    A(f"v_xor_b32 {T0}, {T0}, {T1}")
    A(f"v_lshlrev_b32 {T0}, 4, {T0}")
    A(f"v_bfe_u32 {T1}, {L}, 2, 2")
    A(f"v_lshrrev_b32 {T2}, 5, {L}")
    A(f"v_lshlrev_b32 {T2}, 3, {T2}")
    A(f"v_add_u32 {T1}, {T1}, {T2}")
    A(f"v_lshlrev_b32 {T1}, 7, {T1}")
    A(f"v_add_u32 {T0}, {T0}, {T1}")
    A(f"v_bfe_u32 {T1}, {L}, 1, 1")
    A(f"v_lshlrev_b32 {T1}, 3, {T1}")
    A(f"v_add_u32 {T0}, {T0}, {T1}")
    A(f"v_add_u32 {T0}, {s(sRing)}, {T0}")
    A(f"v_mov_b32 {v(vWa)}, {T0}")
    A(f"v_xor_b32 {v(vWa+1)}, 64, {v(vWa)}")
    A(f"v_and_b32 {T0}, 31, {L}")
    A(f"v_bfe_u32 {T1}, {T0}, 1, 3")
    A(f"v_lshrrev_b32 {T2}, 5, {L}")
    A(f"v_xor_b32 {T1}, {T1}, {T2}")
    A(f"v_lshlrev_b32 {T1}, 4, {T1}")
    A(f"v_lshlrev_b32 {T0}, 7, {T0}")
    A(f"v_add_u32 {T0}, {T0}, {T1}")
    A(f"v_mov_b32 {v(vXa)}, {T0}")
    for kk in range(1, 4): A(f"v_xor_b32 {v(vXa+kk)}, {kk<<5}, {v(vXa)}")
    ST(23)
    for i in range(128): A(f"v_accvgpr_write_b32 {a(i)}, 0")
    for qh in range(2):
        A(f"v_mov_b32 {v(vL+2*qh)}, 0"); A(f"v_mov_b32 {v(vL+2*qh+1)}, 0")
    issue_x(1); issue_w(2); issue_w(3)
    if k0_k == -1: issue_kv(sK, KA, "K0", Q)
    if v0_k == -1: issue_kv(sV, VA, "V0", Q)
    ST(24)
    vXc = vXa + 4
    def rbuf(k): return vWF2 + (k % 3) * 16
    def read_list(k):
        hs, kl, t, kk = k >> 1, k & 1, k >> 2, k & 3
        buf = rbuf(k); out = []
        for dt in range(2):
            for u in range(2):
                out.append(f"ds_read_b64_tr_b16 {v(buf+dt*4+u*2,2)}, {v(vWa+dt)} offset:{WPOS[hs] + kl*2048 + u*512}")
        for qh in range(2):
            out.append(f"ds_read_b128 {v(buf+8+qh*4,4)}, {v(vXc+kk)} offset:{qh*4096}")
        return out
    def pre_reads(k):
        hs, t, kk = k >> 1, k >> 2, k & 3
        if kk == 0:
            Q.wait(f"x{t}", f"w{hs}")
            if not (opt.get("exp_nobar") and t > 0): A("s_barrier")
            for j in range(4): A(f"v_add_u32 {v(vXc+j)}, {XSLOT[t]}, {v(vXa+j)}")
        elif k & 1 == 0:
            Q.wait(f"w{hs}")
    bg = []
    def add(items, avail):
        for it in items: bg.append((it, avail))
    for gname, avail in [("w4",0),("x2",0),("w5",0),("w6",0),("x3",0),("w7",0),("w8",1),("w9",3),("x4",6),("w14",5),("w15",7),("w10",9),("x5",10),
                        ("w11",11),("w12",13),("x6",14),("w13",15),("w16",17),("x7",18),("w17",19),("x8",22),("K0",max(k0_k,23)),("V0",max(v0_k,27))]:
        if gname[0] == "w": add(w_items(int(gname[1:])), avail)
        elif gname[0] == "x": add(x_items(int(gname[1:])), avail)
        elif gname == "K0": add(kv_items(sK, KA, "K0"), avail)
        elif gname == "V0" and v0_k < 36: add(kv_items(sV, VA, "V0"), avail)
    maxd = opt.get("maxd", 3)
    pre_reads(0)
    ST(1)
    for i in read_list(0): A(i)
    for i in read_list(1): A(i)
    for k in range(36):
        rl = []
        if k + 2 < 36:
            pre_reads(k + 2); rl = read_list(k + 2)
        A(f"s_waitcnt lgkmcnt({6 if k + 1 < 36 else 0})")
        buf = rbuf(k); n = 0; nd = 0
        for dt in range(2):
            for qh in range(2):
                acc = v(vQacc + (dt*2+qh)*16, 16)
                c = "0" if k == 0 else acc
                A(f"v_mfma_f32_32x32x16_bf16 {acc}, {v(buf+dt*4,4)}, {v(buf+8+qh*4,4)}, {c}")
                did = False
                if nd < maxd and (n > 0 or maxd >= 4):
                    while bg and bg[0][1] <= k:
                        it = bg.pop(0)[0]
                        emit_items([it])
                        if it[0] == "d": did = True; nd += 1; break
                nr = [3, 1, 1, 1][n] if maxd < 4 else [2, 2, 1, 1][n]
                for i in rl[:nr]: A(i)
                rl = rl[nr:]
                n += 1
        if k & 3 == 3: ST(2 + (k >> 2))
    assert not bg, bg
    A("s_nop 7\ns_nop 5")
    ST(25)
    A("s_barrier")
    ST(26)
    A(f"s_lshl_b32 {s(sT1)}, {s(sWv)}, 13")
    A(f"v_lshlrev_b32 {T0}, 4, {L}")
    A(f"v_add_u32 {T1}, {s(sT1)}, {T0}")
    A(f"v_add_u32 {T1}, {EXTRA}, {T1}")
    A(f"s_lshl_b32 {s(sT1)}, {s(sHH)}, 13")
    A(f"v_add_u32 {T2}, {s(sT1)}, {T0}")
    A(f"v_add_u32 {T2}, {EXTRA}, {T2}")
    for dt in range(2):
        for qh in range(2):
            acc = vQacc + (dt*2+qh)*16
            for m in range(2):
                dst = vVF + ((dt*2+m)*2+qh)*4
                for j in range(4): A(f"v_cvt_pk_bf16_f32 {v(dst+j)}, {v(acc+8*m+2*j)}, {v(acc+8*m+2*j+1)}")
    if v0_k == 36: issue_kv(sV, VA, "V0", Q)
    ST(27)
    for f in range(8): A(f"ds_write_b128 {T1}, {v(vVF+f*4,4)} offset:{f*1024}")
    A("s_waitcnt lgkmcnt(0)")
    A("s_barrier")
    ST(28)
    for half in range(2):
        for kl in range(4):
            for qh in range(2):
                kk = half*4 + kl
                A(f"ds_read_b128 {v(vQ+qh*32+kk*4,4)}, {T2} offset:{half*16384 + (kl*2+qh)*1024}")
        A("s_waitcnt lgkmcnt(0)")
    if dbg == "q":
        A(f"s_lshl_b32 {s(sT0)}, s2, 2"); A(f"s_add_u32 {s(sT0)}, {s(sT0)}, {s(sWv)}"); A(f"s_lshl_b32 {s(sT0)}, {s(sT0)}, 14")
        A(f"s_add_u32 {s(sT0)}, {s(sT0)}, 0x1000000")
        A(f"v_lshlrev_b32 {T0}, 4, {L}"); A(f"v_add_u32 {T0}, {s(sT0)}, {T0}")
        for f in range(16):
            A(f"global_store_dwordx4 {T0}, {v(vQ+f*4,4)}, s[20:21]"); A(f"v_add_u32 {T0}, 1024, {T0}")
        A("s_waitcnt vmcnt(0)")
    ST(19)
    DS(0)
    if stamp: A("s_memrealtime s[72:73]")
    A(f"s_add_u32 {s(sKoff)}, {s(sKoff)}, 16384")
    NW = 9 if (fused and opt.get("wowarm", True)) else 0
    def tile(par, kind, uid):
        ks, vs = (KA, VA) if par == 0 else (KB, VB)
        kw = {"first": 8, "mid": 24, "pen": 24 + NW, "last": 8 + NW + (1 if fused else 0)}[kind]
        vw = {"first": 16, "mid": 24, "pen": 16 + NW, "last": NW}[kind]
        A(f"s_waitcnt vmcnt({kw})")
        for kk in range(8): A(f"ds_read_b128 {v(vKF+kk*4,4)}, {v(vKa+kk)} offset:{ks}")
        for kk in range(8):
            A(f"s_waitcnt lgkmcnt({7-kk})")
            for qh in range(2):
                acc = v(vS+16*qh, 16)
                A(f"v_mfma_f32_32x32x16_bf16 {acc}, {v(vKF+kk*4,4)}, {v(vQ+qh*32+kk*4,4)}, {'0' if kk == 0 else acc}")
        if kind == "first": issue_kv(sK, KB, None); A("s_nop 1")
        elif kind == "mid": issue_kv(sK, ks, None); A("s_nop 1")
        else: A("s_nop 7\ns_nop 5")
        for qh in range(2):
            b = vS + 16*qh; t = v(vT+qh)
            A(f"v_max3_f32 {t}, {v(b)}, {v(b+1)}, {v(b+2)}")
            for i in range(3, 15, 2): A(f"v_max3_f32 {t}, {t}, {v(b+i)}, {v(b+i+1)}")
            A(f"v_max_f32 {t}, {t}, {v(b+15)}")
        if kind == "first":
            for qh in range(2): A(f"v_mov_b32 {v(vT+2+qh)}, {v(vT+qh)}")
            A("s_nop 1")
            for qh in range(2): A(f"v_permlane32_swap_b32 {v(vT+qh)}, {v(vT+2+qh)}")
            A("s_nop 1")
            for qh in range(2): A(f"v_max_f32 {v(vM+qh)}, {v(vT+qh)}, {v(vT+2+qh)}")
            for qh in range(2):
                A(f"v_add_f32 {v(vMT+qh)}, {f2u(THR/QSCALE):#x}, {v(vM+qh)}")
                A(f"v_mul_f32 {v(vNM+qh)}, {f2u(-QSCALE):#x}, {v(vM+qh)}")
        else:
            A(f"v_cmp_gt_f32 vcc, {v(vT)}, {v(vMT)}")
            A(f"v_cmp_gt_f32 {s(sM0,2)}, {v(vT+1)}, {v(vMT+1)}")
            A(f"s_or_b64 {s(sM0,2)}, {s(sM0,2)}, vcc")
            A(f"s_cbranch_scc0 L_k1_back{uid}")
            A(f"s_call_b64 {s(sRet,2)}, L_k1_rare")
            A(f"L_k1_back{uid}:")
        for qh in range(2):
            b = vS + 16*qh
            for i in range(16): A(f"v_fma_f32 {v(b+i)}, {v(b+i)}, {s(sC)}, {v(vNM+qh)}")
            for i in range(16): A(f"v_exp_f32 {v(b+i)}, {v(b+i)}")
        for qh in range(2):
            b = vS + 16*qh
            for i in range(16): A(f"v_add_f32 {v(vL+2*qh+(i&1))}, {v(vL+2*qh+(i&1))}, {v(b+i)}")
            for m in range(2):
                for j in range(4): A(f"v_cvt_pk_bf16_f32 {v(vP+qh*8+m*4+j)}, {v(b+8*m+2*j)}, {v(b+8*m+2*j+1)}")
        if kind == "first":
            issue_kv(sV, VB, None)
            A(f"s_add_u32 {s(sKoff)}, {s(sKoff)}, 16384")
        if fused and kind == "pen":
            A(f"v_mov_b32 {v(vNon+1)}, 0")
            A(f"global_load_dword {v(vNon)}, {v(vNon+1)}, s[22:23] sc1")
        if fused and kind in ("pen", "last"): vw += 1
        A(f"s_waitcnt vmcnt({vw})")
        for dt in range(4):
            for m in range(2):
                for u in range(2):
                    A(f"ds_read_b64_tr_b16 {v(vVF+(dt*2+m)*4+u*2,2)}, {v(vVa+dt*2+u)} offset:{vs + m*4096}")
        for dt in range(4):
            for m in range(2):
                A(f"s_waitcnt lgkmcnt({14-(dt*2+m)*2})")
                for qh in range(2):
                    acc = a((dt*2+qh)*16, 16)
                    A(f"v_mfma_f32_32x32x16_bf16 {acc}, {v(vVF+(dt*2+m)*4,4)}, {v(vP+qh*8+m*4,4)}, {acc}")
        if kind == "first":
            issue_kv(sK, KA, None); issue_kv(sV, VA, None)
            A(f"s_add_u32 {s(sKoff)}, {s(sKoff)}, 16384")
        elif kind == "mid":
            issue_kv(sV, vs, None)
            A(f"s_add_u32 {s(sKoff)}, {s(sKoff)}, 16384")
    if opt.get("ring2"):
        def tile2(kind, uid):
            A("s_waitcnt vmcnt(8)" if kind != "last" else f"s_waitcnt vmcnt({8 + (1 if fused else 0)})")
            for kk in range(8): A(f"ds_read_b128 {v(vKF+kk*4,4)}, {v(vKa+kk)} offset:{KA}")
            for kk in range(8):
                A(f"s_waitcnt lgkmcnt({7-kk})")
                for qh in range(2):
                    acc = v(vS+16*qh, 16)
                    A(f"v_mfma_f32_32x32x16_bf16 {acc}, {v(vKF+kk*4,4)}, {v(vQ+qh*32+kk*4,4)}, {'0' if kk == 0 else acc}")
            if kind != "last": issue_kv(sK, KA, None); A("s_nop 1")
            else: A("s_nop 7\ns_nop 5")
            for qh in range(2):
                b = vS + 16*qh; t = v(vT+qh)
                A(f"v_max3_f32 {t}, {v(b)}, {v(b+1)}, {v(b+2)}")
                for i in range(3, 15, 2): A(f"v_max3_f32 {t}, {t}, {v(b+i)}, {v(b+i+1)}")
                A(f"v_max_f32 {t}, {t}, {v(b+15)}")
            if kind == "first":
                for qh in range(2): A(f"v_mov_b32 {v(vT+2+qh)}, {v(vT+qh)}")
                A("s_nop 1")
                for qh in range(2): A(f"v_permlane32_swap_b32 {v(vT+qh)}, {v(vT+2+qh)}")
                A("s_nop 1")
                for qh in range(2): A(f"v_max_f32 {v(vM+qh)}, {v(vT+qh)}, {v(vT+2+qh)}")
                for qh in range(2):
                    A(f"v_add_f32 {v(vMT+qh)}, {f2u(THR/QSCALE):#x}, {v(vM+qh)}")
                    A(f"v_mul_f32 {v(vNM+qh)}, {f2u(-QSCALE):#x}, {v(vM+qh)}")
            else:
                A(f"v_cmp_gt_f32 vcc, {v(vT)}, {v(vMT)}")
                A(f"v_cmp_gt_f32 {s(sM0,2)}, {v(vT+1)}, {v(vMT+1)}")
                A(f"s_or_b64 {s(sM0,2)}, {s(sM0,2)}, vcc")
                A(f"s_cbranch_scc0 L_k1_back{uid}")
                A(f"s_call_b64 {s(sRet,2)}, L_k1_rare")
                A(f"L_k1_back{uid}:")
            for qh in range(2):
                b = vS + 16*qh
                for i in range(16): A(f"v_fma_f32 {v(b+i)}, {v(b+i)}, {s(sC)}, {v(vNM+qh)}")
                for i in range(16): A(f"v_exp_f32 {v(b+i)}, {v(b+i)}")
            for qh in range(2):
                b = vS + 16*qh
                for i in range(16): A(f"v_add_f32 {v(vL+2*qh+(i&1))}, {v(vL+2*qh+(i&1))}, {v(b+i)}")
                for m in range(2):
                    for j in range(4): A(f"v_cvt_pk_bf16_f32 {v(vP+qh*8+m*4+j)}, {v(b+8*m+2*j)}, {v(b+8*m+2*j+1)}")
            if kind == "pen2":
                A(f"v_mov_b32 {v(vNon+1)}, 0")
                A(f"global_load_dword {v(vNon)}, {v(vNon+1)}, s[22:23] sc1")
                A("s_waitcnt vmcnt(9)")
            elif kind == "last": A("s_waitcnt vmcnt(0)")
            else: A("s_waitcnt vmcnt(8)")
            for dt in range(4):
                for m in range(2):
                    for u in range(2):
                        A(f"ds_read_b64_tr_b16 {v(vVF+(dt*2+m)*4+u*2,2)}, {v(vVa+dt*2+u)} offset:{VA + m*4096}")
            for dt in range(4):
                for m in range(2):
                    A(f"s_waitcnt lgkmcnt({14-(dt*2+m)*2})")
                    for qh in range(2):
                        acc = a((dt*2+qh)*16, 16)
                        A(f"v_mfma_f32_32x32x16_bf16 {acc}, {v(vVF+(dt*2+m)*4,4)}, {v(vP+qh*8+m*4,4)}, {acc}")
            if kind != "last":
                issue_kv(sV, VA, None)
                A(f"s_add_u32 {s(sKoff)}, {s(sKoff)}, 16384")
        tile2("first", 0)
        ST(29)
        A(f"s_mov_b32 {s(sTile)}, 1")
        A("L_k1_loop:")
        tile2("mid", 1)
        A(f"s_add_u32 {s(sTile)}, {s(sTile)}, 1\ns_cmp_lt_u32 {s(sTile)}, 14\ns_cbranch_scc1 L_k1_loop")
        assert fused
        tile2("pen2", 3)
        tile2("last", 4)
        A("s_branch L_k1_epi")
    if not opt.get("ring2"):
      tile(0, "first", 0)
      ST(29)
    if not opt.get("ring2"):
      A(f"s_mov_b32 {s(sTile)}, 1")
      A("L_k1_loop:")
      tile(1, "mid", 1)
      A(f"s_cmp_eq_u32 {s(sTile)}, 13")
      A("s_cbranch_scc1 L_k1_tail")
      tile(0, "mid", 2)
    if not opt.get("ring2"):
      A(f"s_add_u32 {s(sTile)}, {s(sTile)}, 2")
      A("s_branch L_k1_loop")
      A("L_k1_tail:")
      if NW:
          A(f"v_lshlrev_b32 {v(vNon+2)}, 4, {L}")
          for i in range(NW):
              A(f"buffer_load_dwordx4 v[220:223], {v(vNon+2)}, s[96:99], s100 offen {opt.get('wowarmflag','')}")
              A("s_add_u32 s100, s100, 1024")
      tile(0, "pen", 3)
      tile(1, "last", 4)
      A("s_branch L_k1_epi")
    A("L_k1_rare:")
    for qh in range(2): A(f"v_mov_b32 {v(vT+2+qh)}, {v(vT+qh)}")
    A("s_nop 1")
    for qh in range(2): A(f"v_permlane32_swap_b32 {v(vT+qh)}, {v(vT+2+qh)}")
    A("s_nop 1")
    for qh in range(2):
        A(f"v_max3_f32 {v(vT+qh)}, {v(vT+qh)}, {v(vT+2+qh)}, {v(vM+qh)}")
    for qh in range(2):
        A(f"v_sub_f32 {v(vT+2+qh)}, {v(vM+qh)}, {v(vT+qh)}")
    for qh in range(2): A(f"v_mul_f32 {v(vT+2+qh)}, {s(sC)}, {v(vT+2+qh)}")
    for qh in range(2): A(f"v_exp_f32 {v(vT+2+qh)}, {v(vT+2+qh)}")
    for qh in range(2):
        A(f"v_mov_b32 {v(vM+qh)}, {v(vT+qh)}")
        A(f"v_add_f32 {v(vMT+qh)}, {f2u(THR/QSCALE):#x}, {v(vT+qh)}")
        A(f"v_mul_f32 {v(vNM+qh)}, {f2u(-QSCALE):#x}, {v(vT+qh)}")
    for qh in range(2):
        for j in range(2): A(f"v_mul_f32 {v(vL+2*qh+j)}, {v(vL+2*qh+j)}, {v(vT+2+qh)}")
    for dt in range(4):
        for qh in range(2):
            base = (dt*2+qh)*16
            for r0 in range(0, 16, 4):
                for r in range(4): A(f"v_accvgpr_read_b32 {v(vT+4+r)}, {a(base+r0+r)}")
                for r in range(4): A(f"v_mul_f32 {v(vT+4+r)}, {v(vT+4+r)}, {v(vT+2+qh)}")
                for r in range(4): A(f"v_accvgpr_write_b32 {a(base+r0+r)}, {v(vT+4+r)}")
    A("s_nop 1")
    A(f"s_setpc_b64 {s(sRet,2)}")
    A("L_k1_epi:")
    ST(30)
    DS(1)
    if fused:
        A("s_waitcnt vmcnt(0)")
        A(f"s_mov_b32 {s(sT2)}, {1 << 17}")
        A("L_k1_nonce_poll:")
        A(f"v_readfirstlane_b32 {s(sNonce)}, {v(vNon)}")
        A(f"s_cmp_lg_u32 {s(sNonce)}, 0\ns_cbranch_scc1 L_k1_nonce_ok")
        A(f"global_load_dword {v(vNon)}, {v(vNon+1)}, s[22:23] sc1\ns_waitcnt vmcnt(0)")
        A(f"s_sub_u32 {s(sT2)}, {s(sT2)}, 1\ns_cmp_lg_u32 {s(sT2)}, 0\ns_cbranch_scc1 L_k1_nonce_poll")
        A("L_k1_nonce_ok:")
    if stamp: A("s_memrealtime s[74:75]")
    A("s_waitcnt vmcnt(0)")
    MM = vT
    for qh in range(2):
        A(f"v_add_f32 {v(vL+2*qh)}, {v(vL+2*qh)}, {v(vL+2*qh+1)}")
        A(f"v_mov_b32 {v(vL+2*qh+1)}, {v(vL+2*qh)}")
    A("s_nop 1")
    for qh in range(2): A(f"v_permlane32_swap_b32 {v(vL+2*qh)}, {v(vL+2*qh+1)}")
    A("s_nop 1")
    for qh in range(2):
        A(f"v_add_f32 {v(MM+2+qh)}, {v(vL+2*qh)}, {v(vL+2*qh+1)}")
        A(f"v_mov_b32 {v(MM+qh)}, {v(vM+qh)}")
    A(f"v_lshlrev_b32 {v(vKa)}, 4, {L}")
    A(f"s_xor_b32 {s(sT0)}, {s(sRing)}, {2*RING}")
    A(f"v_add_u32 {v(vKa+1)}, {s(sT0)}, {v(vKa)}")
    A(f"v_add_u32 {v(vKa)}, {s(sRing)}, {v(vKa)}")
    A(f"ds_write_b128 {v(vKa)}, {v(MM,4)} offset:16384")
    A(f"v_bfe_u32 {v(vKa+2)}, {L}, 4, 1"); A(f"v_lshlrev_b32 {v(vKa+2)}, 10, {v(vKa+2)}")
    A(f"v_lshrrev_b32 {v(vKa+3)}, 5, {L}"); A(f"v_lshlrev_b32 {v(vKa+3)}, 8, {v(vKa+3)}")
    A(f"v_add_u32 {v(vKa+2)}, {v(vKa+2)}, {v(vKa+3)}")
    A(f"v_and_b32 {v(vKa+3)}, 15, {L}"); A(f"v_lshlrev_b32 {v(vKa+3)}, 4, {v(vKa+3)}")
    A(f"v_add_u32 {v(vKa+2)}, {v(vKa+2)}, {v(vKa+3)}")
    A(f"s_cmp_eq_u32 {s(sKH)}, 0")
    A("s_cbranch_scc0 L_k1_epi1")
    for kh in range(2):
        if kh == 1: A("L_k1_epi1:")
        keep = [2*kh, 2*kh+1]; send = [2*(1-kh), 2*(1-kh)+1]
        f = 0
        for dt in send:
            for qh in range(2):
                for rq in range(4):
                    A(f"ds_write_b128 {v(vKa)}, {a((dt*2+qh)*16+4*rq,4)} offset:{f*1024}"); f += 1
        A("s_waitcnt lgkmcnt(0)")
        A("s_barrier")
        A(f"ds_read_b128 {v(MM+4,4)}, {v(vKa+1)} offset:16384")
        for f in range(16): A(f"ds_read_b128 {v(vS+f*4,4)}, {v(vKa+1)} offset:{f*1024}")
        A("s_waitcnt lgkmcnt(15)")
        FS, FO = vP, vP + 2
        for qh in range(2):
            A(f"v_max_f32 {v(vP+4+qh)}, {v(MM+qh)}, {v(MM+4+qh)}")
        for qh in range(2):
            A(f"v_sub_f32 {v(FS+qh)}, {v(MM+qh)}, {v(vP+4+qh)}")
            A(f"v_sub_f32 {v(FO+qh)}, {v(MM+4+qh)}, {v(vP+4+qh)}")
        for qh in range(2):
            A(f"v_mul_f32 {v(FS+qh)}, {s(sC)}, {v(FS+qh)}")
            A(f"v_mul_f32 {v(FO+qh)}, {s(sC)}, {v(FO+qh)}")
        for qh in range(2):
            A(f"v_exp_f32 {v(FS+qh)}, {v(FS+qh)}")
            A(f"v_exp_f32 {v(FO+qh)}, {v(FO+qh)}")
        A("s_nop 0")
        for qh in range(2):
            A(f"v_mul_f32 {v(vP+4+qh)}, {v(MM+2+qh)}, {v(FS+qh)}")
            A(f"v_fma_f32 {v(vP+4+qh)}, {v(MM+6+qh)}, {v(FO+qh)}, {v(vP+4+qh)}")
        for qh in range(2): A(f"v_rcp_f32 {v(vP+4+qh)}, {v(vP+4+qh)}")
        A("s_nop 0")
        for qh in range(2):
            A(f"v_mul_f32 {v(FS+qh)}, {v(FS+qh)}, {v(vP+4+qh)}")
            A(f"v_mul_f32 {v(FO+qh)}, {v(FO+qh)}, {v(vP+4+qh)}")
        A("s_waitcnt lgkmcnt(0)")
        for dl, dt in enumerate(keep):
            A(f"s_mov_b32 {s(sT0)}, {dt*4096}")
            for qh in range(2):
                oth = vS + (dl*2+qh)*16
                own = (dt*2+qh)*16
                tmp = vVF + qh*16
                for r in range(16): A(f"v_accvgpr_read_b32 {v(tmp+r)}, {a(own+r)}")
                for r in range(16): A(f"v_mul_f32 {v(oth+r)}, {v(oth+r)}, {v(FO+qh)}")
                for r in range(16): A(f"v_fma_f32 {v(oth+r)}, {v(tmp+r)}, {v(FS+qh)}, {v(oth+r)}")
                for m in range(2):
                    dst = vQ + ((dl*2+qh)*2+m)*4
                    for j in range(4): A(f"v_cvt_pk_bf16_f32 {v(dst+j)}, {v(oth+8*m+2*j)}, {v(oth+8*m+2*j+1)}")
                    A(f"buffer_store_dwordx4 {v(dst,4)}, {v(vKa+2)}, {s(sO,4)}, {s(sT0)} offen offset:{qh*2048+m*512} {'sc1' if fused else opt.get('oflag','')}")
        A("s_branch L_k1_fin")
    A("L_k1_fin:")
    if fused:
        from tail import emit_tail
        emit_tail(A, dict(sWv=sWv, sB=sB, sH0=sH0, sType=sType, sNonce=sNonce), opt, VQ, ST, DS)
        if dbgst:
            A("s_waitcnt vmcnt(0)")
            DS(5)
            A("s_waitcnt lgkmcnt(0)")
            A(f"s_cmp_lg_u32 {s(sWv)}, 0\ns_cbranch_scc1 L_dst_skip")
            A("s_mov_b64 exec, 1")
            for i in range(6):
                A(f"s_sub_u32 {s(sT0)}, s{84+2*i}, {s(sNonce)}\nv_mov_b32 v2, {s(sT0)}\nv_mov_b32 v3, {4+4*i}")
                A("global_atomic_umax v3, v2, s[22:23]")
            A("s_waitcnt vmcnt(0)")
            A("L_dst_skip:")
    ST(31)
    if fst:
        A(f"s_lshl_b32 {s(sT0)}, s2, 2"); A(f"s_add_u32 {s(sT0)}, {s(sT0)}, {s(sWv)}"); A(f"s_lshl_b32 {s(sT0)}, {s(sT0)}, 8")
        A(f"s_add_u32 {s(sT0)}, {s(sT0)}, 0x2200000")
        A(f"v_lshlrev_b32 v5, 2, {L}\nv_add_u32 v5, {s(sT0)}, v5")
        A("global_store_dword v5, v250, s[20:21]")
    if stamp:
        A("s_waitcnt vmcnt(0)")
        A("s_memrealtime s[76:77]")
        A("s_waitcnt lgkmcnt(0)")
        A(f"s_lshl_b32 {s(sT0)}, s2, 2"); A(f"s_add_u32 {s(sT0)}, {s(sT0)}, {s(sWv)}"); A(f"s_lshl_b32 {s(sT0)}, {s(sT0)}, 4")
        A(f"s_add_u32 {s(sT0)}, {s(sT0)}, 0x2000000")
        A(f"v_mov_b32 v8, s70\nv_mov_b32 v9, s72\nv_mov_b32 v10, s74\nv_mov_b32 v11, s76\nv_mov_b32 v5, {s(sT0)}")
        A(f"v_cmp_eq_u32 vcc, 0, {L}\ns_and_saveexec_b64 s[80:81], vcc")
        A("global_store_dwordx4 v5, v[8:11], s[20:21]")
    A("L_k1_done:")
    A("s_endpgm")
    return A.text(), kd(name, 512, 102, 256)
```

```python
from asmlib import *
OBUF = 0x0
PART = 0x1000000
FLAG1 = 0x3000000
FLAG2 = 0x3010000
SPIN = 1 << 17

def emit_tail(A, R, opt, VQ, ST, DS):
    sWv, sB, sH0, sType, sNonce = R["sWv"], R["sB"], R["sH0"], R["sType"], R["sNonce"]
    wflag = opt.get("woflag", "nt")
    vL, vT = 1, 2
    vWd, vWa, vOl, vAF, vAcc, vOF = 10, 19, 20, 24, 48, 120
    sW, sO, sP = 24, 28, 32
    sJ, sMT, sN4 = 36, 37, 38
    sT0, sT1, sT2, sT3 = 50, 51, 52, 53
    L = v(vL); T0, T1, T2, T3 = (v(vT+i) for i in range(4))
    Q = VQ(A)
    for i in range(8): Q.issue("ostore")
    A("s_load_dwordx2 s[4:5], s[0:1], 32\ns_load_dwordx2 s[6:7], s[0:1], 72\ns_load_dwordx2 s[8:9], s[0:1], 80")
    A(f"s_and_b32 {s(sJ)}, s2, 7\ns_lshr_b32 {s(sMT)}, {s(sB)}, 1")
    A(f"s_and_b32 {s(sT0)}, {s(sB)}, 1\ns_lshl_b32 {s(sT0)}, {s(sT0)}, 1\ns_bfe_u32 {s(sT1)}, {s(sH0)}, 0x10001\ns_add_u32 {s(sN4)}, {s(sT0)}, {s(sT1)}")
    for i in range(9):
        A(f"v_add_u32 {T0}, {i*64}, {L}")
        A(f"v_mul_u32_u24 {T1}, 3641, {T0}\nv_lshrrev_b32 {T1}, 16, {T1}")
        A(f"v_mul_u32_u24 {T2}, 18, {T1}\nv_sub_u32 {T2}, {T0}, {T2}")
        A(f"v_mul_u32_u24 {T1}, 1152, {T1}\nv_lshlrev_b32 {T2}, 4, {T2}\nv_add_u32 {v(vWd+i)}, {T1}, {T2}")
    A(f"v_lshlrev_b32 {v(vOl)}, 4, {L}")
    A("s_waitcnt lgkmcnt(0)")
    A(f"s_cmp_eq_u32 {s(sType)}, 0\ns_cselect_b32 s4, s4, s6\ns_cselect_b32 s5, s5, s7")
    A(f"s_mul_i32 {s(sT0)}, {s(sJ)}, {512*1152}\ns_mul_i32 {s(sT1)}, {s(sN4)}, 288\ns_add_u32 {s(sT0)}, {s(sT0)}, {s(sT1)}")
    A(f"s_add_u32 {s(sW)}, s4, {s(sT0)}\ns_addc_u32 {s(sW+1)}, s5, 0\ns_and_b32 {s(sW+1)}, {s(sW+1)}, 0xffff")
    A(f"s_sub_u32 {s(sW+2)}, 4718592, {s(sT0)}\ns_mov_b32 {s(sW+3)}, 0x20000")
    ST(17)
    A("s_barrier")
    sRot = 39
    A(f"s_add_u32 {s(sRot)}, {s(sMT)}, {s(sN4)}\ns_and_b32 {s(sRot)}, {s(sRot)}, 3\ns_lshl_b32 {s(sRot)}, {s(sRot)}, 2")
    for g in range(4):
        A(f"s_add_u32 {s(sT2)}, {s(sRot)}, {4*g}\ns_add_u32 {s(sT2)}, {s(sT2)}, {s(sWv)}\ns_and_b32 {s(sT2)}, {s(sT2)}, 15")
        A(f"s_mul_i32 {s(sT0)}, {s(sT2)}, 36864\ns_mul_i32 {s(sT1)}, {s(sWv)}, 9216\ns_add_u32 {s(sT1)}, {s(sT1)}, {4*g*9216}")
        for i in range(9):
            A(f"s_add_u32 m0, {s(sT1)}, {i*1024}")
            A("s_nop 0")
            A(f"buffer_load_dwordx4 {v(vWd+i)}, {s(sW,4)}, {s(sT0)} offen {wflag} lds"); Q.issue("wo")
    A(f"s_lshl_b32 {s(sT0)}, {s(sJ)}, 1\ns_add_u32 {s(sT0)}, {s(sT0)}, {s(sType)}")
    A(f"s_lshl_b32 {s(sT1)}, {s(sT0)}, 3\ns_lshl_b32 {s(sT2)}, {s(sMT)}, 1\ns_add_u32 {s(sT1)}, {s(sT1)}, {s(sT2)}")
    A(f"s_lshr_b32 {s(sT2)}, {s(sWv)}, 1\ns_add_u32 {s(sT1)}, {s(sT1)}, {s(sT2)}\ns_lshl_b32 {s(sT1)}, {s(sT1)}, 16")
    A(f"s_and_b32 {s(sT2)}, {s(sWv)}, 1\ns_lshl_b32 {s(sT2)}, {s(sT2)}, 11\ns_add_u32 {s(sT1)}, {s(sT1)}, {s(sT2)}")
    A(f"s_add_u32 {s(sO)}, s20, {s(sT1)}\ns_addc_u32 {s(sO+1)}, s21, 0\ns_and_b32 {s(sO+1)}, {s(sO+1)}, 0xffff")
    A(f"s_mov_b32 {s(sO+2)}, 0x10000\ns_mov_b32 {s(sO+3)}, 0x20000")
    A(f"s_lshl_b32 {s(sT0)}, {s(sT0)}, 2\ns_add_u32 {s(sT0)}, {s(sT0)}, {s(sMT)}\ns_lshl_b32 {s(sT0)}, {s(sT0)}, 2\ns_add_u32 {s(sT0)}, {s(sT0)}, {s(sN4)}")
    A(f"s_lshl_b32 {s(sT0)}, {s(sT0)}, 2\ns_add_u32 {s(sT0)}, {s(sT0)}, {s(sWv)}\ns_mul_i32 {s(sT0)}, {s(sT0)}, 9216\ns_add_u32 {s(sT0)}, {s(sT0)}, {PART}")
    A(f"s_add_u32 {s(sP)}, s20, {s(sT0)}\ns_addc_u32 {s(sP+1)}, s21, 0\ns_and_b32 {s(sP+1)}, {s(sP+1)}, 0xffff")
    A(f"s_mov_b32 {s(sP+2)}, 9216\ns_mov_b32 {s(sP+3)}, 0x20000")
    A(f"v_lshrrev_b32 {T0}, 5, {L}\nv_lshlrev_b32 {T0}, 4, {T0}\nv_bfe_u32 {T1}, {L}, 4, 1\nv_lshlrev_b32 {T1}, 2, {T1}\nv_add_u32 {T0}, {T0}, {T1}")
    A(f"v_bfe_u32 {T1}, {L}, 2, 2\nv_add_u32 {T0}, {T0}, {T1}\nv_mul_u32_u24 {T0}, 288, {T0}\nv_and_b32 {T1}, 3, {L}\nv_lshlrev_b32 {T1}, 3, {T1}\nv_add_u32 {v(vWa)}, {T0}, {T1}")
    A(f"v_add_u32 {v(vWa+2)}, 0x10000, {v(vWa)}\nv_add_u32 {v(vWa+3)}, 0x20000, {v(vWa)}")
    for i in range(72): A(f"v_mov_b32 {v(vAcc+i)}, 0")
    def handoff(tag, n, flagoff_code):
        A("s_barrier")
        A(f"s_cmp_lg_u32 {s(sWv)}, 0\ns_cbranch_scc1 L_{tag}_skip")
        flagoff_code()
        A(f"s_lshl_b32 {s(sT1)}, {s(sT1)}, 2\ns_add_u32 {s(sT1)}, {s(sT1)}, {s(sT0)}")
        A(f"v_mov_b32 {T0}, {s(sT1)}\nv_mov_b32 {T1}, {s(sNonce)}")
        A(f"s_mov_b64 s[40:41], exec\ns_mov_b64 exec, 1")
        A(f"global_store_dword {T0}, {T1}, s[20:21] sc1")
        A("s_mov_b64 exec, s[40:41]")
        A(f"v_and_b32 {T2}, {n-1}, {L}\nv_lshlrev_b32 {T2}, 2, {T2}\nv_add_u32 {T2}, {s(sT0)}, {T2}")
        A(f"s_mov_b32 {s(sT2)}, {SPIN}")
        A(f"L_{tag}_poll:")
        A(f"global_load_dword {T3}, {T2}, s[20:21] sc1")
        A("s_waitcnt vmcnt(0)")
        A(f"v_cmp_ne_u32 vcc, {s(sNonce)}, {T3}")
        A(f"s_cbranch_vccz L_{tag}_skip")
        A(f"s_sleep 1\ns_sub_u32 {s(sT2)}, {s(sT2)}, 1\ns_cmp_lg_u32 {s(sT2)}, 0\ns_cbranch_scc1 L_{tag}_poll")
        A(f"L_{tag}_skip:")
        A("s_barrier")
    ST(11)
    Q.wait("ostore")
    ST(12)
    def f1():
        A(f"s_lshl_b32 {s(sT0)}, {s(sJ)}, 1\ns_add_u32 {s(sT0)}, {s(sT0)}, {s(sType)}\ns_lshl_b32 {s(sT0)}, {s(sT0)}, 2\ns_add_u32 {s(sT0)}, {s(sT0)}, {s(sMT)}")
        A(f"s_lshl_b32 {s(sT0)}, {s(sT0)}, 7\ns_add_u32 {s(sT0)}, {s(sT0)}, {FLAG1}\ns_mov_b32 {s(sT1)}, {s(sN4)}")
    handoff("h1", 4, f1)
    ST(13)
    DS(2)
    def oload(st, blk):
        if blk == 0: A(f"s_add_u32 {s(sT0)}, {s(sRot)}, {st}\ns_and_b32 {s(sT0)}, {s(sT0)}, 15\ns_lshl_b32 {s(sT0)}, {s(sT0)}, 12")
        A(f"buffer_load_dwordx4 {v(vOF+(st*2+blk)*4,4)}, {v(vOl)}, {s(sO,4)}, {s(sT0)} offen offset:{blk*1024} sc1"); Q.issue(f"o{st}")
    AH = opt.get("oahead", 4)
    for st in range(AH):
        oload(st, 0); oload(st, 1)
    Q.wait("wo")
    A("s_barrier")
    def wa(off):
        if off < 0x10000: return v(vWa), off
        if off < 0x20000: return v(vWa+2), off - 0x10000
        return v(vWa+3), off - 0x20000
    NB = 5
    seq = [(st, nt) for st in range(16) for nt in range(9)]
    def rd(idx):
        st, nt = seq[idx]; buf = vAF + (idx % NB) * 4
        for u in range(2):
            reg, imm = wa(st*9216 + u*8*288 + nt*32)
            A(f"ds_read_b64_tr_b16 {v(buf+u*2,2)}, {reg} offset:{imm}")
    for i in range(NB - 1): rd(i)
    for idx, (st, nt) in enumerate(seq):
        if nt == 0: Q.wait(f"o{st}")
        left = min(len(seq) - 1 - idx, NB - 2)
        A(f"s_waitcnt lgkmcnt({2*left})")
        buf = vAF + (idx % NB) * 4
        for blk in range(2):
            acc = v(vAcc + (nt*2+blk)*4, 4)
            A(f"v_mfma_f32_16x16x32_bf16 {acc}, {v(buf,4)}, {v(vOF+(st*2+blk)*4,4)}, {acc}")
        if idx + NB - 1 < len(seq): rd(idx + NB - 1)
        if st + AH < 16 and nt in (2, 6): oload(st + AH, 0 if nt == 2 else 1)
    A("s_nop 7")
    ST(14)
    DS(3)
    for nt in range(9):
        b = vAcc + nt*8
        for blk in range(2):
            A(f"v_cvt_pk_bf16_f32 {v(vOF+nt*4+blk*2)}, {v(b+blk*4)}, {v(b+blk*4+1)}")
            A(f"v_cvt_pk_bf16_f32 {v(vOF+nt*4+blk*2+1)}, {v(b+blk*4+2)}, {v(b+blk*4+3)}")
        A(f"s_mov_b32 {s(sT0)}, {nt*1024}")
        A(f"buffer_store_dwordx4 {v(vOF+nt*4,4)}, {v(vOl)}, {s(sP,4)}, {s(sT0)} offen sc1")
    A(f"s_lshl_b32 {s(sT0)}, {s(sType)}, 2\ns_add_u32 {s(sT0)}, {s(sT0)}, {s(sMT)}\ns_lshl_b32 {s(sT0)}, {s(sT0)}, 2\ns_add_u32 {s(sT0)}, {s(sT0)}, {s(sN4)}")
    A(f"s_mul_i32 {s(sT0)}, {s(sT0)}, 36864\ns_add_u32 {s(sT0)}, {s(sT0)}, {PART}")
    A(f"s_add_u32 {s(sO)}, s20, {s(sT0)}\ns_addc_u32 {s(sO+1)}, s21, 0\ns_and_b32 {s(sO+1)}, {s(sO+1)}, 0xffff")
    A(f"s_mov_b32 {s(sO+2)}, {7*1179648 + 36864}\ns_mov_b32 {s(sO+3)}, 0x20000")
    A(f"s_mov_b32 {s(sW)}, s8\ns_and_b32 {s(sW+1)}, s9, 0xffff\ns_mov_b32 {s(sW+2)}, 1179648\ns_mov_b32 {s(sW+3)}, 0x20000")
    A(f"s_mul_i32 s42, {s(sMT)}, {128*2304}\ns_mul_i32 {s(sT1)}, {s(sType)}, 1152\ns_add_u32 s42, s42, {s(sT1)}\ns_mul_i32 {s(sT1)}, {s(sN4)}, 288\ns_add_u32 s42, s42, {s(sT1)}")
    vSl, vOa = 24, 28
    for i in range(3):
        A(f"s_mul_i32 {s(sT0)}, {s(sJ)}, 576\ns_lshl_b32 {s(sT1)}, {s(sWv)}, 6\ns_add_u32 {s(sT0)}, {s(sT0)}, {s(sT1)}")
        if i < 2: A(f"s_add_u32 {s(sT0)}, {s(sT0)}, {i*256}")
        else: A(f"s_mul_i32 {s(sT0)}, {s(sJ)}, 576\ns_add_u32 {s(sT0)}, {s(sT0)}, 512")
        A(f"v_add_u32 {T0}, {s(sT0)}, {L}")
        A(f"v_lshlrev_b32 {v(vSl+i)}, 3, {T0}")
        A(f"v_lshrrev_b32 {T1}, 7, {T0}")
        A(f"v_mul_u32_u24 {T2}, 7282, {T1}\nv_lshrrev_b32 {T2}, 16, {T2}")
        A(f"v_mul_u32_u24 {T3}, 9, {T2}\nv_sub_u32 {T1}, {T1}, {T3}")
        A(f"v_lshlrev_b32 {T1}, 5, {T1}")
        A(f"v_lshlrev_b32 {T2}, 5, {T2}")
        A(f"v_and_b32 {T3}, 1, {T0}\nv_lshlrev_b32 {T3}, 4, {T3}\nv_add_u32 {T2}, {T2}, {T3}")
        A(f"v_bfe_u32 {T3}, {T0}, 1, 4\nv_add_u32 {T2}, {T2}, {T3}")
        A(f"v_mul_u32_u24 {T2}, 2304, {T2}\nv_add_u32 {T1}, {T1}, {T2}")
        A(f"v_bfe_u32 {T3}, {T0}, 5, 2\nv_lshlrev_b32 {T3}, 3, {T3}\nv_add_u32 {v(vOa+i)}, {T1}, {T3}")
    A("s_waitcnt vmcnt(0)")
    ST(15)
    def f2():
        A(f"s_lshl_b32 {s(sT0)}, {s(sType)}, 2\ns_add_u32 {s(sT0)}, {s(sT0)}, {s(sMT)}\ns_lshl_b32 {s(sT0)}, {s(sT0)}, 2\ns_add_u32 {s(sT0)}, {s(sT0)}, {s(sN4)}")
        A(f"s_lshl_b32 {s(sT0)}, {s(sT0)}, 7\ns_add_u32 {s(sT0)}, {s(sT0)}, {FLAG2}\ns_mov_b32 {s(sT1)}, {s(sJ)}")
    handoff("h2", 8, f2)
    ST(16)
    DS(4)
    def group(i):
        base = 32 + i*16
        for jj in range(8):
            A(f"s_mov_b32 {s(sT0)}, {jj*1179648}")
            A(f"buffer_load_dwordx2 {v(base+2*jj,2)}, {v(vSl+i)}, {s(sO,4)}, {s(sT0)} offen sc1")
    def reduce(i, later):
        base = 32 + i*16; acc = 84
        for r in range(4): A(f"v_mov_b32 {v(acc+r)}, 0")
        for jj in range(8):
            A(f"s_waitcnt vmcnt({later + 7 - jj})")
            for d in range(2):
                src = base + 2*jj + d
                A(f"v_lshlrev_b32 {v(acc+4)}, 16, {v(src)}\nv_and_b32 {v(acc+5)}, 0xffff0000, {v(src)}")
                A(f"v_add_f32 {v(acc+2*d)}, {v(acc+2*d)}, {v(acc+4)}\nv_add_f32 {v(acc+2*d+1)}, {v(acc+2*d+1)}, {v(acc+5)}")
        A(f"v_cvt_pk_bf16_f32 {v(acc+6+2*i)}, {v(acc)}, {v(acc+1)}\nv_cvt_pk_bf16_f32 {v(acc+7+2*i)}, {v(acc+2)}, {v(acc+3)}")
    A(f"s_cmp_eq_u32 {s(sWv)}, 0\ns_cbranch_scc1 L_red3")
    group(0); group(1)
    reduce(0, 8); reduce(1, 0)
    for i in range(2): A(f"buffer_store_dwordx2 {v(90+2*i,2)}, {v(vOa+i)}, {s(sW,4)}, s42 offen")
    A("s_branch L_red_done")
    A("L_red3:")
    group(0); group(1); group(2)
    reduce(0, 16); reduce(1, 8); reduce(2, 0)
    for i in range(3): A(f"buffer_store_dwordx2 {v(90+2*i,2)}, {v(vOa+i)}, {s(sW,4)}, s42 offen")
    A("L_red_done:")
```

```python
from asmlib import *
import math

LOG2E = 1.4426950408889634
QSCALE = LOG2E / math.sqrt(128.0)
def f2u(x):
    import struct
    return struct.unpack("<I", struct.pack("<f", x))[0]

RING = 32768
KA, VA, KB, VB = 0, 8192, 16384, 24576
EXTRA = 131072
vTID, vLANE = 0, 1
vDMA = 2
vKa = 6
vVa = 14
vM = 22
vMT = 24
vL = 26
vT = 30
vNM = 38
vNon = 216
vQ = 40
vS = 104
vKF = 136
vVF = 168
vP = 200
NV = 216
vQacc = 104
vWF2 = 40
vWdma = 200
vXdma = 204
vWa = 205
vXa = 207
sK, sV, sX, sW, sO = 24, 28, 32, 36, 40
sWv, sHH, sKH, sRing, sKoff, sCnt = 44, 45, 46, 47, 48, 49
sT0, sT1, sT2, sT3 = 50, 51, 52, 53
sRot, sB, sH0, sType = 54, 55, 56, 57
sTile = 58
sXw, sXl = 59, 60
sC = 61
sNonce = 62
sM0, sM1 = 64, 66
sRet = 68

class VQ:
    def __init__(self, A): self.q = []; self.A = A
    def issue(self, tag): self.q.append(tag)
    def wait(self, *tags):
        idx = [i for i, t in enumerate(self.q) if t in tags]
        if not idx: return
        last = max(idx)
        n = len(self.q) - 1 - last
        assert n <= 63, n
        self.A(f"s_waitcnt vmcnt({n})")
        self.q = self.q[last + 1:]
    def wait_all(self):
        self.A("s_waitcnt vmcnt(0)"); self.q = []

def gen_k1(name, opt):
    A = Asm()
    fine = opt.get("fine", True)
    kvflag = opt.get("kvflag", "nt")
    wflag = opt.get("wflag", ""); xflag = opt.get("xflag", "")
    k0_k = opt.get("k0_k", 23); v0_k = opt.get("v0_k", 27)
    THR = opt.get("thr", 8.0)
    dbg = opt.get("dbg", None)
    stamp = opt.get("stamp", False)
    dbgst = opt.get("dbgstamp", False)
    def DS(i):
        if dbgst: A(f"s_memrealtime s[{70+2*i}:{71+2*i}]")
    fst = opt.get("fstamp", False)
    def ST(i):
        if fst and (fst is True or i in fst):
            A("s_memrealtime s[80:81]\ns_memtime s[82:83]\ns_waitcnt lgkmcnt(0)"); A(f"v_writelane_b32 v250, s80, {i}"); A(f"v_writelane_b32 v250, s82, {i+32}")
    A(f".globl {name}\n.p2align 8\n.type {name},@function\n{name}:")
    A(f"s_cmp_ge_u32 s2, 256\ns_cbranch_scc1 L_k1_done")
    if stamp: A("s_memrealtime s[70:71]")
    A("s_load_dwordx8 s[4:11], s[0:1], 0")
    A("s_load_dwordx8 s[12:19], s[0:1], 40")
    A("s_load_dwordx2 s[20:21], s[0:1], 96")
    A("s_load_dwordx2 s[22:23], s[0:1], 88")
    if opt.get("fused"):
        A("s_load_dwordx2 s[96:97], s[0:1], 32\ns_load_dwordx2 s[98:99], s[0:1], 72")
    A(f"v_lshrrev_b32 {v(vT)}, 6, v0")
    A(f"v_and_b32 {v(vLANE)}, 63, v0")
    A(f"v_readfirstlane_b32 {s(sWv)}, {v(vT)}")
    A(f"s_and_b32 {s(sT0)}, s2, 7")
    A(f"s_lshr_b32 {s(sT1)}, s2, 3")
    A(f"s_and_b32 {s(sType)}, {s(sT1)}, 1")
    A(f"s_lshr_b32 {s(sT1)}, {s(sT1)}, 1")
    A(f"s_and_b32 {s(sT2)}, {s(sT1)}, 1")
    A(f"s_lshr_b32 {s(sB)}, {s(sT1)}, 1")
    A(f"s_lshl_b32 {s(sH0)}, {s(sT0)}, 2")
    A(f"s_lshl_b32 {s(sT3)}, {s(sT2)}, 1")
    A(f"s_add_u32 {s(sH0)}, {s(sH0)}, {s(sT3)}")
    A(f"s_lshl_b32 {s(sT3)}, {s(sT2)}, 2")
    A(f"s_add_u32 {s(sRot)}, {s(sB)}, {s(sT3)}")
    A(f"s_and_b32 {s(sRot)}, {s(sRot)}, 7")
    A(f"s_and_b32 {s(sHH)}, {s(sWv)}, 1")
    A(f"s_lshr_b32 {s(sKH)}, {s(sWv)}, 1")
    A(f"s_lshl_b32 {s(sRing)}, {s(sWv)}, 15")
    A("s_waitcnt lgkmcnt(0)")
    A(f"s_cmp_eq_u32 {s(sType)}, 0")
    for i in range(8): A(f"s_cselect_b32 {s(4+i)}, {s(4+i)}, {s(12+i)}")
    if opt.get("fused"):
        A("s_cselect_b32 s96, s96, s98\ns_cselect_b32 s97, s97, s99")
    A(f"s_add_u32 {s(sT0)}, {s(sH0)}, {s(sHH)}")
    A(f"s_lshl_b32 {s(sT1)}, {s(sB)}, 5")
    A(f"s_add_u32 {s(sT1)}, {s(sT1)}, {s(sT0)}")
    A(f"s_lshr_b32 {s(sT2)}, {s(sH0)}, 1")
    A(f"s_lshl_b32 {s(sT3)}, {s(sB)}, 4")
    A(f"s_add_u32 {s(sT2)}, {s(sT2)}, {s(sT3)}")
    A(f"s_cmp_eq_u32 {s(sType)}, 0")
    A(f"s_cselect_b32 {s(sT2)}, {s(sT2)}, {s(sT1)}")
    A(f"s_lshl_b32 {s(sT2)}, {s(sT2)}, 18")
    for srd, p in ((sK, 6), (sV, 8)):
        A(f"s_add_u32 {s(srd)}, {s(p)}, {s(sT2)}")
        A(f"s_addc_u32 {s(srd+1)}, {s(p+1)}, 0")
        A(f"s_and_b32 {s(srd+1)}, {s(srd+1)}, 0xffff")
        A(f"s_mov_b32 {s(srd+2)}, 0x40000")
        A(f"s_mov_b32 {s(srd+3)}, 0x20000")
    fused = opt.get("fused", False)
    if fused:
        A(f"s_and_b32 {s(sT1)}, s2, 7\ns_lshl_b32 {s(sT1)}, {s(sT1)}, 1\ns_add_u32 {s(sT1)}, {s(sT1)}, {s(sType)}")
        A(f"s_lshl_b32 {s(sT1)}, {s(sT1)}, 3\ns_add_u32 {s(sT1)}, {s(sT1)}, {s(sB)}\ns_lshl_b32 {s(sT1)}, {s(sT1)}, 2")
        A(f"s_and_b32 {s(sT2)}, {s(sT0)}, 3\ns_add_u32 {s(sT1)}, {s(sT1)}, {s(sT2)}")
    else:
        A(f"s_lshl_b32 {s(sT2)}, {s(sType)}, 8")
        A(f"s_add_u32 {s(sT1)}, {s(sT1)}, {s(sT2)}")
    A(f"s_lshl_b32 {s(sT1)}, {s(sT1)}, 14")
    A(f"s_add_u32 {s(sO)}, s20, {s(sT1)}")
    A(f"s_addc_u32 {s(sO+1)}, s21, 0")
    A(f"s_and_b32 {s(sO+1)}, {s(sO+1)}, 0xffff")
    A(f"s_mov_b32 {s(sO+2)}, 16384")
    A(f"s_mov_b32 {s(sO+3)}, 0x20000")
    A(f"s_mul_i32 {s(sT1)}, {s(sB)}, 73728")
    A(f"s_add_u32 {s(sX)}, s4, {s(sT1)}")
    A(f"s_addc_u32 {s(sX+1)}, s5, 0")
    A(f"s_and_b32 {s(sX+1)}, {s(sX+1)}, 0xffff")
    A(f"s_mov_b32 {s(sX+2)}, 73728")
    A(f"s_mov_b32 {s(sX+3)}, 0x20000")
    A(f"s_lshl_b32 {s(sT1)}, {s(sT0)}, 8")
    A(f"s_lshl_b32 {s(sT2)}, {s(sKH)}, 7")
    A(f"s_add_u32 {s(sT1)}, {s(sT1)}, {s(sT2)}")
    A(f"s_add_u32 {s(sW)}, s10, {s(sT1)}")
    A(f"s_addc_u32 {s(sW+1)}, s11, 0")
    A(f"s_and_b32 {s(sW+1)}, {s(sW+1)}, 0xffff")
    A(f"s_sub_u32 {s(sW+2)}, 4718592, {s(sT1)}")
    A(f"s_mov_b32 {s(sW+3)}, 0x20000")
    L = v(vLANE); T0, T1, T2, T3 = (v(vT + i) for i in range(4))
    A(f"v_lshrrev_b32 {T0}, 4, {L}")
    A(f"s_lshl_b32 {s(sT1)}, {s(sHH)}, 2")
    A(f"v_or_b32 {T0}, {s(sT1)}, {T0}")
    A(f"v_and_b32 {T1}, 7, {L}")
    A(f"v_xor_b32 {T0}, {T0}, {T1}")
    A(f"v_lshlrev_b32 {T0}, 4, {T0}")
    A(f"v_lshrrev_b32 {T1}, 3, {L}")
    A(f"v_mul_u32_u24 {T2}, 1152, {T1}")
    A(f"v_add_u32 {v(vXdma)}, {T0}, {T2}")
    A(f"v_lshrrev_b32 {T0}, 4, {L}")
    A(f"v_and_b32 {T0}, 1, {T0}")
    A(f"v_lshlrev_b32 {T0}, 2, {T0}")
    A(f"v_and_b32 {T2}, 7, {L}")
    A(f"v_xor_b32 {T0}, {T0}, {T2}")
    A(f"v_lshlrev_b32 {T0}, 4, {T0}")
    A(f"v_lshlrev_b32 {T1}, 13, {T1}")
    A(f"v_add_u32 {v(vWdma)}, {T0}, {T1}")
    for n in range(1, 4): A(f"v_add_u32 {v(vWdma+n)}, {n*64512}, {v(vWdma)}")
    Q = VQ(A)
    if fused:
        A(f"s_or_b32 {s(sT0)}, s2, {s(sWv)}\ns_cmp_eq_u32 {s(sT0)}, 0\ns_cbranch_scc0 L_k1_nonce_done")
        A(f"s_memrealtime s[62:63]\ns_waitcnt lgkmcnt(0)\ns_or_b32 s62, s62, 1")
        A(f"v_mov_b32 {T0}, s62\nv_mov_b32 {T1}, 0")
        A(f"s_mov_b64 s[62:63], exec\ns_mov_b64 exec, 1")
        A(f"global_store_dword {T1}, {T0}, s[22:23] sc1")
        A("s_mov_b64 exec, s[62:63]")
        A("L_k1_nonce_done:")
    if fst: A("v_mov_b32 v250, 0")
    ST(0)
    XSLOT = [EXTRA + (i & 3)*8192 for i in range(9)]
    sWo = 4
    sTa, sTb = 13, 14
    def x_items(t):
        out = [("s", f"s_lshr_b32 {s(sTa)}, {s(sWo+t)}, 12"), ("s", f"s_add_u32 {s(sTa)}, {s(sTa)}, {s(sXw)}"),
               ("s", f"s_add_u32 m0, {s(sXl)}, {XSLOT[t]}"), ("s", f"s_add_u32 {s(sTb)}, {s(sTa)}, {4*9216}"),
               ("d", f"buffer_load_dwordx4 {v(vXdma)}, {s(sX,4)}, {s(sTa)} offen {xflag} lds", f"x{t}"),
               ("s", f"s_add_u32 m0, {s(sXl)}, {XSLOT[t] + 4096}"), ("s", "s_nop 0"),
               ("d", f"buffer_load_dwordx4 {v(vXdma)}, {s(sX,4)}, {s(sTb)} offen {xflag} lds", f"x{t}")]
        return out
    def emit_items(items):
        for it in items:
            A(it[1])
            if it[0] == "d": Q.issue(it[2])
    def issue_x(t): emit_items(x_items(t))
    WPOS = {0: KB, 1: KB+4096, 2: VB, 3: VB+4096, 4: KA, 5: KA+4096, 6: VA, 7: VA+4096, 8: KB, 9: KB+4096,
            10: KA, 11: KA+4096, 12: VA, 13: VA+4096, 14: VB, 15: VB+4096, 16: KB, 17: KB+4096}
    WISSUE = {4: 0, 5: 1, 6: 2, 7: 3, 8: 4, 9: 5, 14: 6, 15: 7, 10: 9, 11: 11, 12: 13, 13: 15, 16: 17, 17: 19}
    def w_items(hs):
        t = hs >> 1
        out = [("s", f"s_add_u32 m0, {s(sRing)}, {WPOS[hs]}")]
        if hs & 1: out.append(("s", f"s_add_u32 {s(sTa)}, {s(sWo+t)}, {32*8192}")); so = sTa
        else: out.append(("s", "s_nop 0")); so = sWo + t
        for n in range(4):
            out.append(("d", f"buffer_load_dwordx4 {v(vWdma+n)}, {s(sW,4)}, {s(so)} offen offset:{n*1024} {wflag} lds", f"w{hs}"))
        return out
    def issue_w(hs): emit_items(w_items(hs))
    def kv_items(srd, slot, tag):
        hs = 8192 if fine else 4096
        out = []
        for half in range(2):
            out.append(("s", f"s_add_u32 m0, {s(sRing)}, {slot + half*4096}"))
            out.append(("s", f"s_add_u32 {s(sT0)}, {s(sKoff)}, {half*hs}"))
            for n in range(4):
                out.append(("d", f"buffer_load_dwordx4 {v(vDMA+n)}, {s(srd,4)}, {s(sT0)} offen offset:{n*1024} {kvflag} lds", tag))
        return out
    def issue_kv(srd, slot, tag, q=None):
        hs = 8192 if fine else 4096
        for half in range(2):
            A(f"s_add_u32 m0, {s(sRing)}, {slot + half*4096}")
            A(f"s_add_u32 {s(sT0)}, {s(sKoff)}, {half*hs}")
            for n in range(4):
                A(f"buffer_load_dwordx4 {v(vDMA+n)}, {s(srd,4)}, {s(sT0)} offen offset:{n*1024} {kvflag} lds")
                if q is not None: q.issue(tag)
    A(f"s_mov_b32 {s(sC)}, {f2u(QSCALE):#x}")
    A(f"s_mul_i32 {s(sXw)}, {s(sWv)}, 9216")
    A(f"s_lshl_b32 {s(sXl)}, {s(sWv)}, 10")
    for t in range(9):
        A(f"s_add_u32 {s(sWo+t)}, {s(sRot)}, {t}\ns_cmp_ge_u32 {s(sWo+t)}, 9\ns_cselect_b32 {s(sT3)}, 9, 0\ns_sub_u32 {s(sWo+t)}, {s(sWo+t)}, {s(sT3)}\ns_lshl_b32 {s(sWo+t)}, {s(sWo+t)}, 19")
        if t == 0: issue_x(0); issue_w(0); issue_w(1)
    ST(20)
    A(f"v_lshrrev_b32 {T0}, 4, {L}")
    A(f"v_lshlrev_b32 {T1}, 2, {T0}")
    A(f"v_and_b32 {T2}, 15, {L}")
    A(f"v_xor_b32 {T1}, {T1}, {T2}")
    A(f"v_lshlrev_b32 {T0}, 8, {T0}")
    for n in range(4):
        A(f"v_xor_b32 {T2}, {n}, {T1}")
        A(f"v_lshlrev_b32 {T2}, 4, {T2}")
        A(f"v_add_u32 {v(vDMA+n)}, {T0}, {T2}")
        if fine and n: A(f"v_add_u32 {v(vDMA+n)}, {n*1024}, {v(vDMA+n)}")
    A(f"s_lshl_b32 {s(sKoff)}, {s(sKH)}, {10 if fine else 13}")
    A(f"v_and_b32 {T0}, 31, {L}")
    A(f"v_and_b32 {T1}, 3, {T0}")
    A(f"v_lshlrev_b32 {T1}, 2, {T1}")
    A(f"v_bfe_u32 {T2}, {T0}, 2, 2")
    A(f"v_or_b32 {T1}, {T1}, {T2}")
    A(f"v_lshrrev_b32 {T2}, 5, {L}")
    A(f"v_xor_b32 {T1}, {T1}, {T2}")
    A(f"v_lshlrev_b32 {T1}, 4, {T1}")
    A(f"v_lshlrev_b32 {T0}, 8, {T0}")
    A(f"v_add_u32 {T0}, {T0}, {T1}")
    A(f"v_add_u32 {v(vKa)}, {s(sRing)}, {T0}")
    for kk in range(1, 8): A(f"v_xor_b32 {v(vKa+kk)}, {kk<<5}, {v(vKa)}")
    A(f"v_bfe_u32 {T0}, {L}, 4, 1")
    A(f"v_lshlrev_b32 {T0}, 1, {T0}")
    A(f"v_bfe_u32 {T1}, {L}, 1, 1")
    A(f"v_or_b32 {T0}, {T0}, {T1}")
    A(f"v_bfe_u32 {T1}, {L}, 2, 2")
    A(f"v_lshlrev_b32 {T2}, 2, {T1}")
    A(f"v_xor_b32 {T0}, {T0}, {T2}")
    A(f"v_lshrrev_b32 {T2}, 5, {L}")
    A(f"v_xor_b32 {T0}, {T0}, {T2}")
    A(f"v_lshlrev_b32 {T0}, 4, {T0}")
    A(f"v_lshlrev_b32 {T2}, 2, {T2}")
    A(f"v_add_u32 {T1}, {T1}, {T2}")
    A(f"v_lshlrev_b32 {T1}, 8, {T1}")
    A(f"v_add_u32 {T0}, {T0}, {T1}")
    A(f"v_and_b32 {T1}, 1, {L}")
    A(f"v_lshlrev_b32 {T1}, 3, {T1}")
    A(f"v_add_u32 {T0}, {T0}, {T1}")
    A(f"v_add_u32 {T0}, {s(sRing)}, {T0}")
    for dt in range(4):
        for u in range(2):
            A(f"v_xor_b32 {v(vVa+dt*2+u)}, {(dt<<6)|(u<<5)}, {T0}")
            if u: A(f"v_add_u32 {v(vVa+dt*2+u)}, 2048, {v(vVa+dt*2+u)}")
    A(f"v_bfe_u32 {T0}, {L}, 4, 1")
    A(f"v_lshlrev_b32 {T0}, 1, {T0}")
    A(f"v_and_b32 {T1}, 1, {L}")
    A(f"v_or_b32 {T0}, {T0}, {T1}")
    A(f"v_bfe_u32 {T1}, {L}, 3, 1")
    A(f"v_lshlrev_b32 {T1}, 2, {T1}")
    A(f"v_xor_b32 {T0}, {T0}, {T1}")
    A(f"v_lshlrev_b32 {T0}, 4, {T0}")
    A(f"v_bfe_u32 {T1}, {L}, 2, 2")
    A(f"v_lshrrev_b32 {T2}, 5, {L}")
    A(f"v_lshlrev_b32 {T2}, 3, {T2}")
    A(f"v_add_u32 {T1}, {T1}, {T2}")
    A(f"v_lshlrev_b32 {T1}, 7, {T1}")
    A(f"v_add_u32 {T0}, {T0}, {T1}")
    A(f"v_bfe_u32 {T1}, {L}, 1, 1")
    A(f"v_lshlrev_b32 {T1}, 3, {T1}")
    A(f"v_add_u32 {T0}, {T0}, {T1}")
    A(f"v_add_u32 {T0}, {s(sRing)}, {T0}")
    A(f"v_mov_b32 {v(vWa)}, {T0}")
    A(f"v_xor_b32 {v(vWa+1)}, 64, {v(vWa)}")
    A(f"v_and_b32 {T0}, 31, {L}")
    A(f"v_bfe_u32 {T1}, {T0}, 1, 3")
    A(f"v_lshrrev_b32 {T2}, 5, {L}")
    A(f"v_xor_b32 {T1}, {T1}, {T2}")
    A(f"v_lshlrev_b32 {T1}, 4, {T1}")
    A(f"v_lshlrev_b32 {T0}, 7, {T0}")
    A(f"v_add_u32 {T0}, {T0}, {T1}")
    A(f"v_mov_b32 {v(vXa)}, {T0}")
    for kk in range(1, 4): A(f"v_xor_b32 {v(vXa+kk)}, {kk<<5}, {v(vXa)}")
    ST(23)
    if fused:
        import tail
        tail.emit_tail_setup(A, dict(sWv=sWv, sB=sB, sH0=sH0), opt, vT)
    for i in range(128): A(f"v_accvgpr_write_b32 {a(i)}, 0")
    for qh in range(2):
        A(f"v_mov_b32 {v(vL+2*qh)}, 0"); A(f"v_mov_b32 {v(vL+2*qh+1)}, 0")
    issue_x(1); issue_w(2); issue_w(3)
    if k0_k == -1: issue_kv(sK, KA, "K0", Q)
    if v0_k == -1: issue_kv(sV, VA, "V0", Q)
    ST(24)
    vXc = vXa + 4
    def rbuf(k): return vWF2 + (k % 3) * 16
    def read_list(k):
        hs, kl, t, kk = k >> 1, k & 1, k >> 2, k & 3
        buf = rbuf(k); out = []
        for dt in range(2):
            for u in range(2):
                out.append(f"ds_read_b64_tr_b16 {v(buf+dt*4+u*2,2)}, {v(vWa+dt)} offset:{WPOS[hs] + kl*2048 + u*512}")
        for qh in range(2):
            out.append(f"ds_read_b128 {v(buf+8+qh*4,4)}, {v(vXc+kk)} offset:{qh*4096}")
        return out
    def pre_reads(k):
        hs, t, kk = k >> 1, k >> 2, k & 3
        if kk == 0:
            Q.wait(f"x{t}", f"w{hs}")
            if not (opt.get("exp_nobar") and t > 0): A("s_barrier")
            for j in range(4): A(f"v_add_u32 {v(vXc+j)}, {XSLOT[t]}, {v(vXa+j)}")
        elif k & 1 == 0:
            Q.wait(f"w{hs}")
    bg = []
    def add(items, avail):
        for it in items: bg.append((it, avail))
    for gname, avail in [("w4",0),("x2",0),("w5",0),("w6",0),("x3",0),("w7",0),("w8",1),("w9",3),("x4",6),("w14",5),("w15",7),("w10",9),("x5",10),
                        ("w11",11),("w12",13),("x6",14),("w13",15),("w16",17),("x7",18),("w17",19),("x8",22),("K0",max(k0_k,23)),("V0",max(v0_k,27))]:
        if gname[0] == "w": add(w_items(int(gname[1:])), avail)
        elif gname[0] == "x": add(x_items(int(gname[1:])), avail)
        elif gname == "K0": add(kv_items(sK, KA, "K0"), avail)
        elif gname == "V0" and v0_k < 36: add(kv_items(sV, VA, "V0"), avail)
    maxd = opt.get("maxd", 3)
    pre_reads(0)
    ST(1)
    for i in read_list(0): A(i)
    for i in read_list(1): A(i)
    for k in range(36):
        rl = []
        if k + 2 < 36:
            pre_reads(k + 2); rl = read_list(k + 2)
        A(f"s_waitcnt lgkmcnt({6 if k + 1 < 36 else 0})")
        buf = rbuf(k); n = 0; nd = 0
        for dt in range(2):
            for qh in range(2):
                acc = v(vQacc + (dt*2+qh)*16, 16)
                c = "0" if k == 0 else acc
                A(f"v_mfma_f32_32x32x16_bf16 {acc}, {v(buf+dt*4,4)}, {v(buf+8+qh*4,4)}, {c}")
                did = False
                if nd < maxd and (n > 0 or maxd >= 4):
                    while bg and bg[0][1] <= k:
                        it = bg.pop(0)[0]
                        emit_items([it])
                        if it[0] == "d": did = True; nd += 1; break
                nr = [3, 1, 1, 1][n] if maxd < 4 else [2, 2, 1, 1][n]
                for i in rl[:nr]: A(i)
                rl = rl[nr:]
                n += 1
        if k & 3 == 3: ST(2 + (k >> 2))
    assert not bg, bg
    A("s_nop 7\ns_nop 5")
    ST(25)
    A("s_barrier")
    ST(26)
    A(f"s_lshl_b32 {s(sT1)}, {s(sWv)}, 13")
    A(f"v_lshlrev_b32 {T0}, 4, {L}")
    A(f"v_add_u32 {T1}, {s(sT1)}, {T0}")
    A(f"v_add_u32 {T1}, {EXTRA}, {T1}")
    A(f"s_lshl_b32 {s(sT1)}, {s(sHH)}, 13")
    A(f"v_add_u32 {T2}, {s(sT1)}, {T0}")
    A(f"v_add_u32 {T2}, {EXTRA}, {T2}")
    for dt in range(2):
        for qh in range(2):
            acc = vQacc + (dt*2+qh)*16
            for m in range(2):
                dst = vVF + ((dt*2+m)*2+qh)*4
                for j in range(4): A(f"v_cvt_pk_bf16_f32 {v(dst+j)}, {v(acc+8*m+2*j)}, {v(acc+8*m+2*j+1)}")
    if v0_k == 36: issue_kv(sV, VA, "V0", Q)
    ST(27)
    for f in range(8): A(f"ds_write_b128 {T1}, {v(vVF+f*4,4)} offset:{f*1024}")
    A("s_waitcnt lgkmcnt(0)")
    A("s_barrier")
    ST(28)
    for half in range(2):
        for kl in range(4):
            for qh in range(2):
                kk = half*4 + kl
                A(f"ds_read_b128 {v(vQ+qh*32+kk*4,4)}, {T2} offset:{half*16384 + (kl*2+qh)*1024}")
        A("s_waitcnt lgkmcnt(0)")
    if dbg == "q":
        A(f"s_lshl_b32 {s(sT0)}, s2, 2"); A(f"s_add_u32 {s(sT0)}, {s(sT0)}, {s(sWv)}"); A(f"s_lshl_b32 {s(sT0)}, {s(sT0)}, 14")
        A(f"s_add_u32 {s(sT0)}, {s(sT0)}, 0x1000000")
        A(f"v_lshlrev_b32 {T0}, 4, {L}"); A(f"v_add_u32 {T0}, {s(sT0)}, {T0}")
        for f in range(16):
            A(f"global_store_dwordx4 {T0}, {v(vQ+f*4,4)}, s[20:21]"); A(f"v_add_u32 {T0}, 1024, {T0}")
        A("s_waitcnt vmcnt(0)")
    ST(19)
    DS(0)
    if stamp: A("s_memrealtime s[72:73]")
    A(f"s_add_u32 {s(sKoff)}, {s(sKoff)}, 16384")
    NW = 9 if (fused and opt.get("wowarm", True)) else 0
    def tile(par, kind, uid):
        ks, vs = (KA, VA) if par == 0 else (KB, VB)
        kw = {"first": 8, "mid": 24, "pen": 24 + NW, "last": 8 + NW + (1 if fused else 0)}[kind]
        vw = {"first": 16, "mid": 24, "pen": 16 + NW, "last": NW}[kind]
        A(f"s_waitcnt vmcnt({kw})")
        for kk in range(8): A(f"ds_read_b128 {v(vKF+kk*4,4)}, {v(vKa+kk)} offset:{ks}")
        for kk in range(8):
            A(f"s_waitcnt lgkmcnt({7-kk})")
            for qh in range(2):
                acc = v(vS+16*qh, 16)
                A(f"v_mfma_f32_32x32x16_bf16 {acc}, {v(vKF+kk*4,4)}, {v(vQ+qh*32+kk*4,4)}, {'0' if kk == 0 else acc}")
        if kind == "first": issue_kv(sK, KB, None); A("s_nop 1")
        elif kind == "mid": issue_kv(sK, ks, None); A("s_nop 1")
        else: A("s_nop 7\ns_nop 5")
        for qh in range(2):
            b = vS + 16*qh; t = v(vT+qh)
            A(f"v_max3_f32 {t}, {v(b)}, {v(b+1)}, {v(b+2)}")
            for i in range(3, 15, 2): A(f"v_max3_f32 {t}, {t}, {v(b+i)}, {v(b+i+1)}")
            A(f"v_max_f32 {t}, {t}, {v(b+15)}")
        if kind == "first":
            for qh in range(2): A(f"v_mov_b32 {v(vT+2+qh)}, {v(vT+qh)}")
            A("s_nop 1")
            for qh in range(2): A(f"v_permlane32_swap_b32 {v(vT+qh)}, {v(vT+2+qh)}")
            A("s_nop 1")
            for qh in range(2): A(f"v_max_f32 {v(vM+qh)}, {v(vT+qh)}, {v(vT+2+qh)}")
            for qh in range(2):
                A(f"v_add_f32 {v(vMT+qh)}, {f2u(THR/QSCALE):#x}, {v(vM+qh)}")
                A(f"v_mul_f32 {v(vNM+qh)}, {f2u(-QSCALE):#x}, {v(vM+qh)}")
        else:
            A(f"v_cmp_gt_f32 vcc, {v(vT)}, {v(vMT)}")
            A(f"v_cmp_gt_f32 {s(sM0,2)}, {v(vT+1)}, {v(vMT+1)}")
            A(f"s_or_b64 {s(sM0,2)}, {s(sM0,2)}, vcc")
            A(f"s_cbranch_scc0 L_k1_back{uid}")
            A(f"s_call_b64 {s(sRet,2)}, L_k1_rare")
            A(f"L_k1_back{uid}:")
        for qh in range(2):
            b = vS + 16*qh
            for i in range(16): A(f"v_fma_f32 {v(b+i)}, {v(b+i)}, {s(sC)}, {v(vNM+qh)}")
            for i in range(16): A(f"v_exp_f32 {v(b+i)}, {v(b+i)}")
        for qh in range(2):
            b = vS + 16*qh
            for i in range(16): A(f"v_add_f32 {v(vL+2*qh+(i&1))}, {v(vL+2*qh+(i&1))}, {v(b+i)}")
            for m in range(2):
                for j in range(4): A(f"v_cvt_pk_bf16_f32 {v(vP+qh*8+m*4+j)}, {v(b+8*m+2*j)}, {v(b+8*m+2*j+1)}")
        if kind == "first":
            issue_kv(sV, VB, None)
            A(f"s_add_u32 {s(sKoff)}, {s(sKoff)}, 16384")
        if fused and kind == "pen":
            A(f"v_mov_b32 {v(vNon+1)}, 0")
            A(f"global_load_dword {v(vNon)}, {v(vNon+1)}, s[22:23] sc1")
        if fused and kind in ("pen", "last"): vw += 1
        A(f"s_waitcnt vmcnt({vw})")
        for dt in range(4):
            for m in range(2):
                for u in range(2):
                    A(f"ds_read_b64_tr_b16 {v(vVF+(dt*2+m)*4+u*2,2)}, {v(vVa+dt*2+u)} offset:{vs + m*4096}")
        for dt in range(4):
            for m in range(2):
                A(f"s_waitcnt lgkmcnt({14-(dt*2+m)*2})")
                for qh in range(2):
                    acc = a((dt*2+qh)*16, 16)
                    A(f"v_mfma_f32_32x32x16_bf16 {acc}, {v(vVF+(dt*2+m)*4,4)}, {v(vP+qh*8+m*4,4)}, {acc}")
        if kind == "first":
            issue_kv(sK, KA, None); issue_kv(sV, VA, None)
            A(f"s_add_u32 {s(sKoff)}, {s(sKoff)}, 16384")
        elif kind == "mid":
            issue_kv(sV, vs, None)
            A(f"s_add_u32 {s(sKoff)}, {s(sKoff)}, 16384")
    if opt.get("ring2"):
        def tile2(kind, uid):
            A("s_waitcnt vmcnt(8)" if kind != "last" else f"s_waitcnt vmcnt({8 + (1 if fused else 0)})")
            for kk in range(8): A(f"ds_read_b128 {v(vKF+kk*4,4)}, {v(vKa+kk)} offset:{KA}")
            for kk in range(8):
                A(f"s_waitcnt lgkmcnt({7-kk})")
                for qh in range(2):
                    acc = v(vS+16*qh, 16)
                    A(f"v_mfma_f32_32x32x16_bf16 {acc}, {v(vKF+kk*4,4)}, {v(vQ+qh*32+kk*4,4)}, {'0' if kk == 0 else acc}")
            NW2 = 0
            if kind != "last": issue_kv(sK, KA, None); A("s_nop 1")
            else: A("s_nop 7\ns_nop 5")
            for qh in range(2):
                b = vS + 16*qh; t = v(vT+qh)
                A(f"v_max3_f32 {t}, {v(b)}, {v(b+1)}, {v(b+2)}")
                for i in range(3, 15, 2): A(f"v_max3_f32 {t}, {t}, {v(b+i)}, {v(b+i+1)}")
                A(f"v_max_f32 {t}, {t}, {v(b+15)}")
            if kind == "first":
                for qh in range(2): A(f"v_mov_b32 {v(vT+2+qh)}, {v(vT+qh)}")
                A("s_nop 1")
                for qh in range(2): A(f"v_permlane32_swap_b32 {v(vT+qh)}, {v(vT+2+qh)}")
                A("s_nop 1")
                for qh in range(2): A(f"v_max_f32 {v(vM+qh)}, {v(vT+qh)}, {v(vT+2+qh)}")
                for qh in range(2):
                    A(f"v_add_f32 {v(vMT+qh)}, {f2u(THR/QSCALE):#x}, {v(vM+qh)}")
                    A(f"v_mul_f32 {v(vNM+qh)}, {f2u(-QSCALE):#x}, {v(vM+qh)}")
            else:
                A(f"v_cmp_gt_f32 vcc, {v(vT)}, {v(vMT)}")
                A(f"v_cmp_gt_f32 {s(sM0,2)}, {v(vT+1)}, {v(vMT+1)}")
                A(f"s_or_b64 {s(sM0,2)}, {s(sM0,2)}, vcc")
                A(f"s_cbranch_scc0 L_k1_back{uid}")
                A(f"s_call_b64 {s(sRet,2)}, L_k1_rare")
                A(f"L_k1_back{uid}:")
            for qh in range(2):
                b = vS + 16*qh
                for i in range(16): A(f"v_fma_f32 {v(b+i)}, {v(b+i)}, {s(sC)}, {v(vNM+qh)}")
                for i in range(16): A(f"v_exp_f32 {v(b+i)}, {v(b+i)}")
            for qh in range(2):
                b = vS + 16*qh
                for i in range(16): A(f"v_add_f32 {v(vL+2*qh+(i&1))}, {v(vL+2*qh+(i&1))}, {v(b+i)}")
                for m in range(2):
                    for j in range(4): A(f"v_cvt_pk_bf16_f32 {v(vP+qh*8+m*4+j)}, {v(b+8*m+2*j)}, {v(b+8*m+2*j+1)}")
            if kind == "pen2":
                A(f"v_mov_b32 {v(vNon+1)}, 0")
                A(f"global_load_dword {v(vNon)}, {v(vNon+1)}, s[22:23] sc1")
                A("s_waitcnt vmcnt(9)")
            elif kind == "last": A(f"s_waitcnt vmcnt({NW2})")
            else: A("s_waitcnt vmcnt(8)")
            for dt in range(4):
                for m in range(2):
                    for u in range(2):
                        A(f"ds_read_b64_tr_b16 {v(vVF+(dt*2+m)*4+u*2,2)}, {v(vVa+dt*2+u)} offset:{VA + m*4096}")
            for dt in range(4):
                for m in range(2):
                    A(f"s_waitcnt lgkmcnt({14-(dt*2+m)*2})")
                    for qh in range(2):
                        acc = a((dt*2+qh)*16, 16)
                        A(f"v_mfma_f32_32x32x16_bf16 {acc}, {v(vVF+(dt*2+m)*4,4)}, {v(vP+qh*8+m*4,4)}, {acc}")
            if kind != "last":
                issue_kv(sV, VA, None)
                A(f"s_add_u32 {s(sKoff)}, {s(sKoff)}, 16384")
        tile2("first", 0)
        ST(29)
        A(f"s_mov_b32 {s(sTile)}, 1")
        A("L_k1_loop:")
        tile2("mid", 1)
        A(f"s_add_u32 {s(sTile)}, {s(sTile)}, 1\ns_cmp_lt_u32 {s(sTile)}, 14\ns_cbranch_scc1 L_k1_loop")
        assert fused
        tile2("pen2", 3)
        tile2("last", 4)
        A("s_branch L_k1_epi")
    if not opt.get("ring2"):
      tile(0, "first", 0)
      ST(29)
    if not opt.get("ring2"):
      A(f"s_mov_b32 {s(sTile)}, 1")
      A("L_k1_loop:")
      tile(1, "mid", 1)
      A(f"s_cmp_eq_u32 {s(sTile)}, 13")
      A("s_cbranch_scc1 L_k1_tail")
      tile(0, "mid", 2)
    if not opt.get("ring2"):
      A(f"s_add_u32 {s(sTile)}, {s(sTile)}, 2")
      A("s_branch L_k1_loop")
      A("L_k1_tail:")
      if NW:
          A(f"v_lshlrev_b32 {v(vNon+2)}, 4, {L}")
          for i in range(NW):
              A(f"buffer_load_dwordx4 v[220:223], {v(vNon+2)}, s[96:99], s100 offen {opt.get('wowarmflag','')}")
              A("s_add_u32 s100, s100, 1024")
      tile(0, "pen", 3)
      tile(1, "last", 4)
      A("s_branch L_k1_epi")
    A("L_k1_rare:")
    for qh in range(2): A(f"v_mov_b32 {v(vT+2+qh)}, {v(vT+qh)}")
    A("s_nop 1")
    for qh in range(2): A(f"v_permlane32_swap_b32 {v(vT+qh)}, {v(vT+2+qh)}")
    A("s_nop 1")
    for qh in range(2):
        A(f"v_max3_f32 {v(vT+qh)}, {v(vT+qh)}, {v(vT+2+qh)}, {v(vM+qh)}")
    for qh in range(2):
        A(f"v_sub_f32 {v(vT+2+qh)}, {v(vM+qh)}, {v(vT+qh)}")
    for qh in range(2): A(f"v_mul_f32 {v(vT+2+qh)}, {s(sC)}, {v(vT+2+qh)}")
    for qh in range(2): A(f"v_exp_f32 {v(vT+2+qh)}, {v(vT+2+qh)}")
    for qh in range(2):
        A(f"v_mov_b32 {v(vM+qh)}, {v(vT+qh)}")
        A(f"v_add_f32 {v(vMT+qh)}, {f2u(THR/QSCALE):#x}, {v(vT+qh)}")
        A(f"v_mul_f32 {v(vNM+qh)}, {f2u(-QSCALE):#x}, {v(vT+qh)}")
    for qh in range(2):
        for j in range(2): A(f"v_mul_f32 {v(vL+2*qh+j)}, {v(vL+2*qh+j)}, {v(vT+2+qh)}")
    for dt in range(4):
        for qh in range(2):
            base = (dt*2+qh)*16
            for r0 in range(0, 16, 4):
                for r in range(4): A(f"v_accvgpr_read_b32 {v(vT+4+r)}, {a(base+r0+r)}")
                for r in range(4): A(f"v_mul_f32 {v(vT+4+r)}, {v(vT+4+r)}, {v(vT+2+qh)}")
                for r in range(4): A(f"v_accvgpr_write_b32 {a(base+r0+r)}, {v(vT+4+r)}")
    A("s_nop 1")
    A(f"s_setpc_b64 {s(sRet,2)}")
    A("L_k1_epi:")
    ST(30)
    DS(1)
    if fused:
        A("s_waitcnt vmcnt(0)")
        A(f"s_mov_b32 {s(sT2)}, {1 << 17}")
        A("L_k1_nonce_poll:")
        A(f"v_readfirstlane_b32 {s(sNonce)}, {v(vNon)}")
        A(f"s_cmp_lg_u32 {s(sNonce)}, 0\ns_cbranch_scc1 L_k1_nonce_ok")
        A(f"global_load_dword {v(vNon)}, {v(vNon+1)}, s[22:23] sc1\ns_waitcnt vmcnt(0)")
        A(f"s_sub_u32 {s(sT2)}, {s(sT2)}, 1\ns_cmp_lg_u32 {s(sT2)}, 0\ns_cbranch_scc1 L_k1_nonce_poll")
        A("L_k1_nonce_ok:")
        import tail
        for it in tail.wo_items(0, sRing, opt): A(it[1])
    if stamp: A("s_memrealtime s[74:75]")
    MM = vT
    for qh in range(2):
        A(f"v_add_f32 {v(vL+2*qh)}, {v(vL+2*qh)}, {v(vL+2*qh+1)}")
        A(f"v_mov_b32 {v(vL+2*qh+1)}, {v(vL+2*qh)}")
    A("s_nop 1")
    for qh in range(2): A(f"v_permlane32_swap_b32 {v(vL+2*qh)}, {v(vL+2*qh+1)}")
    A("s_nop 1")
    for qh in range(2):
        A(f"v_add_f32 {v(MM+2+qh)}, {v(vL+2*qh)}, {v(vL+2*qh+1)}")
        A(f"v_mov_b32 {v(MM+qh)}, {v(vM+qh)}")
    A(f"v_lshlrev_b32 {v(vKa)}, 4, {L}")
    A(f"s_xor_b32 {s(sT0)}, {s(sRing)}, {2*RING}")
    A(f"v_add_u32 {v(vKa+1)}, {s(sT0)}, {v(vKa)}")
    A(f"v_add_u32 {v(vKa)}, {s(sRing)}, {v(vKa)}")
    A(f"ds_write_b128 {v(vKa)}, {v(MM,4)} offset:16384")
    A(f"v_bfe_u32 {v(vKa+2)}, {L}, 4, 1"); A(f"v_lshlrev_b32 {v(vKa+2)}, 10, {v(vKa+2)}")
    A(f"v_lshrrev_b32 {v(vKa+3)}, 5, {L}"); A(f"v_lshlrev_b32 {v(vKa+3)}, 8, {v(vKa+3)}")
    A(f"v_add_u32 {v(vKa+2)}, {v(vKa+2)}, {v(vKa+3)}")
    A(f"v_and_b32 {v(vKa+3)}, 15, {L}"); A(f"v_lshlrev_b32 {v(vKa+3)}, 4, {v(vKa+3)}")
    A(f"v_add_u32 {v(vKa+2)}, {v(vKa+2)}, {v(vKa+3)}")
    A(f"s_cmp_eq_u32 {s(sKH)}, 0")
    A("s_cbranch_scc0 L_k1_epi1")
    for kh in range(2):
        if kh == 1: A("L_k1_epi1:")
        keep = [2*kh, 2*kh+1]; send = [2*(1-kh), 2*(1-kh)+1]
        f = 0
        for dt in send:
            for qh in range(2):
                for rq in range(4):
                    A(f"ds_write_b128 {v(vKa)}, {a((dt*2+qh)*16+4*rq,4)} offset:{f*1024}"); f += 1
        A("s_waitcnt lgkmcnt(0)")
        A("s_barrier")
        A(f"ds_read_b128 {v(MM+4,4)}, {v(vKa+1)} offset:16384")
        for f in range(16): A(f"ds_read_b128 {v(vS+f*4,4)}, {v(vKa+1)} offset:{f*1024}")
        A("s_waitcnt lgkmcnt(15)")
        FS, FO = vP, vP + 2
        for qh in range(2):
            A(f"v_max_f32 {v(vP+4+qh)}, {v(MM+qh)}, {v(MM+4+qh)}")
        for qh in range(2):
            A(f"v_sub_f32 {v(FS+qh)}, {v(MM+qh)}, {v(vP+4+qh)}")
            A(f"v_sub_f32 {v(FO+qh)}, {v(MM+4+qh)}, {v(vP+4+qh)}")
        for qh in range(2):
            A(f"v_mul_f32 {v(FS+qh)}, {s(sC)}, {v(FS+qh)}")
            A(f"v_mul_f32 {v(FO+qh)}, {s(sC)}, {v(FO+qh)}")
        for qh in range(2):
            A(f"v_exp_f32 {v(FS+qh)}, {v(FS+qh)}")
            A(f"v_exp_f32 {v(FO+qh)}, {v(FO+qh)}")
        A("s_nop 0")
        for qh in range(2):
            A(f"v_mul_f32 {v(vP+4+qh)}, {v(MM+2+qh)}, {v(FS+qh)}")
            A(f"v_fma_f32 {v(vP+4+qh)}, {v(MM+6+qh)}, {v(FO+qh)}, {v(vP+4+qh)}")
        for qh in range(2): A(f"v_rcp_f32 {v(vP+4+qh)}, {v(vP+4+qh)}")
        A("s_nop 0")
        for qh in range(2):
            A(f"v_mul_f32 {v(FS+qh)}, {v(FS+qh)}, {v(vP+4+qh)}")
            A(f"v_mul_f32 {v(FO+qh)}, {v(FO+qh)}, {v(vP+4+qh)}")
        A("s_waitcnt lgkmcnt(0)")
        for dl, dt in enumerate(keep):
            A(f"s_mov_b32 {s(sT0)}, {dt*4096}")
            for qh in range(2):
                oth = vS + (dl*2+qh)*16
                own = (dt*2+qh)*16
                tmp = vVF + qh*16
                for r in range(16): A(f"v_accvgpr_read_b32 {v(tmp+r)}, {a(own+r)}")
                for r in range(16): A(f"v_mul_f32 {v(oth+r)}, {v(oth+r)}, {v(FO+qh)}")
                for r in range(16): A(f"v_fma_f32 {v(oth+r)}, {v(tmp+r)}, {v(FS+qh)}, {v(oth+r)}")
                for m in range(2):
                    dst = vQ + ((dl*2+qh)*2+m)*4
                    for j in range(4): A(f"v_cvt_pk_bf16_f32 {v(dst+j)}, {v(oth+8*m+2*j)}, {v(oth+8*m+2*j+1)}")
                    A(f"buffer_store_dwordx4 {v(dst,4)}, {v(vKa+2)}, {s(sO,4)}, {s(sT0)} offen offset:{qh*2048+m*512} {'sc1' if fused else opt.get('oflag','')}")
        A("s_branch L_k1_fin")
    A("L_k1_fin:")
    if fused:
        from tail import emit_tail
        emit_tail(A, dict(sWv=sWv, sB=sB, sH0=sH0, sType=sType, sNonce=sNonce, sRing=sRing), opt, VQ, ST, DS)
        if dbgst:
            A("s_waitcnt vmcnt(0)")
            DS(5)
            A("s_waitcnt lgkmcnt(0)")
            A(f"s_cmp_lg_u32 {s(sWv)}, 0\ns_cbranch_scc1 L_dst_skip")
            A("s_mov_b64 exec, 1")
            for i in range(6):
                A(f"s_sub_u32 {s(sT0)}, s{70+2*i}, {s(sNonce)}\nv_mov_b32 v2, {s(sT0)}\nv_mov_b32 v3, {4+4*i}")
                A("global_atomic_umax v3, v2, s[22:23]")
            A("s_waitcnt vmcnt(0)")
            A("L_dst_skip:")
    ST(31)
    if fst:
        A(f"s_lshl_b32 {s(sT0)}, s2, 2"); A(f"s_add_u32 {s(sT0)}, {s(sT0)}, {s(sWv)}"); A(f"s_lshl_b32 {s(sT0)}, {s(sT0)}, 8")
        A(f"s_add_u32 {s(sT0)}, {s(sT0)}, 0x2200000")
        A(f"v_lshlrev_b32 v5, 2, {L}\nv_add_u32 v5, {s(sT0)}, v5")
        A("global_store_dword v5, v250, s[20:21]")
    if stamp:
        A("s_waitcnt vmcnt(0)")
        A("s_memrealtime s[76:77]")
        A("s_waitcnt lgkmcnt(0)")
        A(f"s_lshl_b32 {s(sT0)}, s2, 2"); A(f"s_add_u32 {s(sT0)}, {s(sT0)}, {s(sWv)}"); A(f"s_lshl_b32 {s(sT0)}, {s(sT0)}, 4")
        A(f"s_add_u32 {s(sT0)}, {s(sT0)}, 0x2000000")
        A(f"v_mov_b32 v8, s70\nv_mov_b32 v9, s72\nv_mov_b32 v10, s74\nv_mov_b32 v11, s76\nv_mov_b32 v5, {s(sT0)}")
        A(f"v_cmp_eq_u32 vcc, 0, {L}\ns_and_saveexec_b64 s[80:81], vcc")
        A("global_store_dwordx4 v5, v[8:11], s[20:21]")
    A("L_k1_done:")
    A("s_endpgm")
    return A.text(), kd(name, 512, 102, 256)
```

```python
from asmlib import *
OBUF = 0x0
PART = 0x1000000
FLAG1 = 0x3000000
FLAG2 = 0x3010000
SPIN = 1 << 17

sJ, sMT, sN4, sRot, sWG, sWO = 88, 89, 90, 91, 92, 96
vWd = 224
WOSLOT = {0: 23552, 1: 0, 2: 9216, 3: 23552}

def emit_tail_setup(A, R, opt, vtmp):
    sWv, sB, sH0 = R["sWv"], R["sB"], R["sH0"]
    sT0, sT1, sT2 = 50, 51, 52
    L = v(1); T0, T1, T2 = (v(vtmp+i) for i in range(3))
    A(f"s_and_b32 {s(sJ)}, s2, 7\ns_lshr_b32 {s(sMT)}, {s(sB)}, 1")
    A(f"s_and_b32 {s(sT0)}, {s(sB)}, 1\ns_lshl_b32 {s(sT0)}, {s(sT0)}, 1\ns_bfe_u32 {s(sT1)}, {s(sH0)}, 0x10001\ns_add_u32 {s(sN4)}, {s(sT0)}, {s(sT1)}")
    A(f"s_mul_i32 {s(sT0)}, {s(sJ)}, {512*1152}\ns_mul_i32 {s(sT1)}, {s(sN4)}, 288\ns_add_u32 {s(sT0)}, {s(sT0)}, {s(sT1)}")
    A(f"s_add_u32 {s(sWO)}, {s(sWO)}, {s(sT0)}\ns_addc_u32 {s(sWO+1)}, {s(sWO+1)}, 0\ns_and_b32 {s(sWO+1)}, {s(sWO+1)}, 0xffff")
    A(f"s_sub_u32 {s(sWO+2)}, 4718592, {s(sT0)}\ns_mov_b32 {s(sWO+3)}, 0x20000")
    A(f"s_add_u32 {s(sRot)}, {s(sMT)}, {s(sN4)}\ns_and_b32 {s(sRot)}, {s(sRot)}, 3\ns_lshl_b32 {s(sRot)}, {s(sRot)}, 2")
    for g in range(4):
        A(f"s_add_u32 {s(sT2)}, {s(sRot)}, {4*g}\ns_add_u32 {s(sT2)}, {s(sT2)}, {s(sWv)}\ns_and_b32 {s(sT2)}, {s(sT2)}, 15")
        A(f"s_mul_i32 {s(sWG+g)}, {s(sT2)}, 36864")
    for i in range(9):
        A(f"v_add_u32 {T0}, {i*64}, {L}")
        A(f"v_mul_u32_u24 {T1}, 3641, {T0}\nv_lshrrev_b32 {T1}, 16, {T1}")
        A(f"v_mul_u32_u24 {T2}, 18, {T1}\nv_sub_u32 {T2}, {T0}, {T2}")
        A(f"v_mul_u32_u24 {T1}, 1152, {T1}\nv_lshlrev_b32 {T2}, 4, {T2}\nv_add_u32 {v(vWd+i)}, {T1}, {T2}")

def wo_items(g, sRing, opt):
    out = []
    for i in range(9):
        out.append(("s", f"s_add_u32 m0, {s(sRing)}, {WOSLOT[g] + i*1024}"))
        out.append(("s", "s_nop 0"))
        out.append(("d", f"buffer_load_dwordx4 {v(vWd+i)}, {s(sWO,4)}, {s(sWG+g)} offen {opt.get('woflag', '')} lds", f"wo{g}"))
    return out

def emit_tail(A, R, opt, VQ, ST, DS):
    sWv, sB, sH0, sType, sNonce, sRing = R["sWv"], R["sB"], R["sH0"], R["sType"], R["sNonce"], R["sRing"]
    vL, vT = 1, 2
    vWa, vOl, vAF, vAcc, vOF = 19, 20, 24, 48, 120
    sW, sO, sP = 24, 28, 32
    sT0, sT1, sT2, sT3 = 50, 51, 52, 53
    L = v(vL); T0, T1, T2, T3 = (v(vT+i) for i in range(4))
    Q = VQ(A)
    for i in range(8): Q.issue("ostore")
    A("s_load_dwordx2 s[8:9], s[0:1], 80")
    A(f"v_lshlrev_b32 {v(vOl)}, 4, {L}")
    def emit(items):
        for it in items:
            A(it[1])
            if it[0] == "d": Q.issue(it[2])
    ST(17)
    A("s_barrier")
    emit(wo_items(1, sRing, opt))
    A(f"s_lshl_b32 {s(sT0)}, {s(sJ)}, 1\ns_add_u32 {s(sT0)}, {s(sT0)}, {s(sType)}")
    A(f"s_lshl_b32 {s(sT1)}, {s(sT0)}, 3\ns_lshl_b32 {s(sT2)}, {s(sMT)}, 1\ns_add_u32 {s(sT1)}, {s(sT1)}, {s(sT2)}")
    A(f"s_lshr_b32 {s(sT2)}, {s(sWv)}, 1\ns_add_u32 {s(sT1)}, {s(sT1)}, {s(sT2)}\ns_lshl_b32 {s(sT1)}, {s(sT1)}, 16")
    A(f"s_and_b32 {s(sT2)}, {s(sWv)}, 1\ns_lshl_b32 {s(sT2)}, {s(sT2)}, 11\ns_add_u32 {s(sT1)}, {s(sT1)}, {s(sT2)}")
    A(f"s_add_u32 {s(sO)}, s20, {s(sT1)}\ns_addc_u32 {s(sO+1)}, s21, 0\ns_and_b32 {s(sO+1)}, {s(sO+1)}, 0xffff")
    A(f"s_mov_b32 {s(sO+2)}, 0x10000\ns_mov_b32 {s(sO+3)}, 0x20000")
    A(f"s_lshl_b32 {s(sT0)}, {s(sT0)}, 2\ns_add_u32 {s(sT0)}, {s(sT0)}, {s(sMT)}\ns_lshl_b32 {s(sT0)}, {s(sT0)}, 2\ns_add_u32 {s(sT0)}, {s(sT0)}, {s(sN4)}")
    A(f"s_lshl_b32 {s(sT0)}, {s(sT0)}, 2\ns_add_u32 {s(sT0)}, {s(sT0)}, {s(sWv)}\ns_mul_i32 {s(sT0)}, {s(sT0)}, 9216\ns_add_u32 {s(sT0)}, {s(sT0)}, {PART}")
    A(f"s_add_u32 {s(sP)}, s20, {s(sT0)}\ns_addc_u32 {s(sP+1)}, s21, 0\ns_and_b32 {s(sP+1)}, {s(sP+1)}, 0xffff")
    A(f"s_mov_b32 {s(sP+2)}, 9216\ns_mov_b32 {s(sP+3)}, 0x20000")
    A(f"v_lshrrev_b32 {T0}, 5, {L}\nv_lshlrev_b32 {T0}, 4, {T0}\nv_bfe_u32 {T1}, {L}, 4, 1\nv_lshlrev_b32 {T1}, 2, {T1}\nv_add_u32 {T0}, {T0}, {T1}")
    A(f"v_bfe_u32 {T1}, {L}, 2, 2\nv_add_u32 {T0}, {T0}, {T1}\nv_mul_u32_u24 {T0}, 288, {T0}\nv_and_b32 {T1}, 3, {L}\nv_lshlrev_b32 {T1}, 3, {T1}\nv_add_u32 {v(vWa)}, {T0}, {T1}")
    A(f"v_add_u32 {v(vWa+2)}, 0x10000, {v(vWa)}\nv_add_u32 {v(vWa+3)}, 0x20000, {v(vWa)}")
    for i in range(72): A(f"v_mov_b32 {v(vAcc+i)}, 0")
    def publish(tag, flagoff_code):
        A("s_barrier")
        flagoff_code()
        A(f"s_mov_b32 s43, {s(sT0)}")
        A(f"s_cmp_lg_u32 {s(sWv)}, 0\ns_cbranch_scc1 L_{tag}_nopub")
        A(f"s_lshl_b32 {s(sT1)}, {s(sT1)}, 2\ns_add_u32 {s(sT1)}, {s(sT1)}, {s(sT0)}")
        A(f"v_mov_b32 {T0}, {s(sT1)}\nv_mov_b32 {T1}, {s(sNonce)}")
        A(f"s_mov_b64 s[40:41], exec\ns_mov_b64 exec, 1")
        A(f"global_store_dword {T0}, {T1}, s[20:21] sc1")
        A("s_mov_b64 exec, s[40:41]")
        A(f"L_{tag}_nopub:")
    def await_flags(tag, lane_member_code):
        lane_member_code()
        A(f"v_lshlrev_b32 {T2}, 2, {T2}\nv_add_u32 {T2}, s43, {T2}")
        A(f"s_mov_b32 {s(sT2)}, {SPIN}")
        A(f"L_{tag}_poll:")
        A(f"global_load_dword {T3}, {T2}, s[20:21] sc1")
        A("s_waitcnt vmcnt(0)")
        A(f"v_cmp_ne_u32 vcc, {s(sNonce)}, {T3}")
        A(f"s_cbranch_vccz L_{tag}_ok")
        A(f"s_sleep 1\ns_sub_u32 {s(sT2)}, {s(sT2)}, 1\ns_cmp_lg_u32 {s(sT2)}, 0\ns_cbranch_scc1 L_{tag}_poll")
        A(f"L_{tag}_ok:")
        Q.q = []
    ST(11)
    Q.wait("ostore")
    ST(12)
    def f1():
        A(f"s_lshl_b32 {s(sT0)}, {s(sJ)}, 1\ns_add_u32 {s(sT0)}, {s(sT0)}, {s(sType)}\ns_lshl_b32 {s(sT0)}, {s(sT0)}, 2\ns_add_u32 {s(sT0)}, {s(sT0)}, {s(sMT)}")
        A(f"s_lshl_b32 {s(sT0)}, {s(sT0)}, 7\ns_add_u32 {s(sT0)}, {s(sT0)}, {FLAG1}\ns_mov_b32 {s(sT1)}, {s(sN4)}")
    publish("h1", f1)
    emit(wo_items(2, sRing, opt))
    def m1():
        A(f"s_and_b32 {s(sT0)}, {s(sWv)}, 2\nv_and_b32 {T2}, 1, {L}\nv_or_b32 {T2}, {s(sT0)}, {T2}")
    await_flags("h1", m1)
    ST(13)
    DS(2)
    def o_items(st):
        out = [("s", f"s_add_u32 {s(sT0)}, {s(sRot)}, {st}"), ("s", f"s_and_b32 {s(sT0)}, {s(sT0)}, 15"), ("s", f"s_lshl_b32 {s(sT0)}, {s(sT0)}, 12")]
        for blk in range(2):
            out.append(("d", f"buffer_load_dwordx4 {v(vOF+(st*2+blk)*4,4)}, {v(vOl)}, {s(sO,4)}, {s(sT0)} offen offset:{blk*1024} sc1", f"o{st}"))
        return out
    for st in range(4): emit(o_items(st))
    def wa(off):
        if off < 0x10000: return v(vWa), off
        if off < 0x20000: return v(vWa+2), off - 0x10000
        return v(vWa+3), off - 0x20000
    NB = 5
    A("s_barrier")
    seq = [(st, nt) for st in range(16) for nt in range(9)]
    def rd(idx):
        st, nt = seq[idx]; buf = vAF + (idx % NB) * 4
        for u in range(2):
            reg, imm = wa((st & 3)*32768 + WOSLOT[st >> 2] + u*8*288 + nt*32)
            A(f"ds_read_b64_tr_b16 {v(buf+u*2,2)}, {reg} offset:{imm}")
    bg = []
    for i in range(NB - 1): rd(i)
    for idx, (st, nt) in enumerate(seq):
        if nt == 0:
            if st % 4 == 0 and st < 12:
                for s2_ in range(st + 4, st + 8): bg += o_items(s2_)
            if st == 4:
                A("s_barrier")
                bg = wo_items(3, sRing, opt) + bg
            Q.wait(f"o{st}")
        if (st, nt) == (11, 9 - (NB - 1)):
            Q.wait("wo3"); A("s_barrier")
        left = min(len(seq) - 1 - idx, NB - 2)
        A(f"s_waitcnt lgkmcnt({2*left})")
        buf = vAF + (idx % NB) * 4
        for blk in range(2):
            acc = v(vAcc + (nt*2+blk)*4, 4)
            A(f"v_mfma_f32_16x16x32_bf16 {acc}, {v(buf,4)}, {v(vOF+(st*2+blk)*4,4)}, {acc}")
        if idx + NB - 1 < len(seq): rd(idx + NB - 1)
        if idx & 1:
            while bg:
                it = bg.pop(0); emit([it])
                if it[0] == "d": break
    assert not bg
    A("s_nop 7")
    ST(14)
    DS(3)
    for nt in range(9):
        b = vAcc + nt*8
        for blk in range(2):
            A(f"v_cvt_pk_bf16_f32 {v(vOF+nt*4+blk*2)}, {v(b+blk*4)}, {v(b+blk*4+1)}")
            A(f"v_cvt_pk_bf16_f32 {v(vOF+nt*4+blk*2+1)}, {v(b+blk*4+2)}, {v(b+blk*4+3)}")
        A(f"s_mov_b32 {s(sT0)}, {nt*1024}")
        A(f"buffer_store_dwordx4 {v(vOF+nt*4,4)}, {v(vOl)}, {s(sP,4)}, {s(sT0)} offen sc1")
    A(f"s_lshl_b32 {s(sT0)}, {s(sType)}, 2\ns_add_u32 {s(sT0)}, {s(sT0)}, {s(sMT)}\ns_lshl_b32 {s(sT0)}, {s(sT0)}, 2\ns_add_u32 {s(sT0)}, {s(sT0)}, {s(sN4)}")
    A(f"s_mul_i32 {s(sT0)}, {s(sT0)}, 36864\ns_add_u32 {s(sT0)}, {s(sT0)}, {PART}")
    A(f"s_add_u32 {s(sO)}, s20, {s(sT0)}\ns_addc_u32 {s(sO+1)}, s21, 0\ns_and_b32 {s(sO+1)}, {s(sO+1)}, 0xffff")
    A(f"s_mov_b32 {s(sO+2)}, {7*1179648 + 36864}\ns_mov_b32 {s(sO+3)}, 0x20000")
    A(f"s_mov_b32 {s(sW)}, s8\ns_and_b32 {s(sW+1)}, s9, 0xffff\ns_mov_b32 {s(sW+2)}, 1179648\ns_mov_b32 {s(sW+3)}, 0x20000")
    A(f"s_mul_i32 s42, {s(sMT)}, {128*2304}\ns_mul_i32 {s(sT1)}, {s(sType)}, 1152\ns_add_u32 s42, s42, {s(sT1)}\ns_mul_i32 {s(sT1)}, {s(sN4)}, 288\ns_add_u32 s42, s42, {s(sT1)}")
    vSl, vOa = 24, 28
    for i in range(3):
        A(f"s_mul_i32 {s(sT0)}, {s(sJ)}, 576\ns_lshl_b32 {s(sT1)}, {s(sWv)}, 6\ns_add_u32 {s(sT0)}, {s(sT0)}, {s(sT1)}")
        if i < 2: A(f"s_add_u32 {s(sT0)}, {s(sT0)}, {i*256}")
        else: A(f"s_mul_i32 {s(sT0)}, {s(sJ)}, 576\ns_add_u32 {s(sT0)}, {s(sT0)}, 512")
        A(f"v_add_u32 {T0}, {s(sT0)}, {L}")
        A(f"v_lshlrev_b32 {v(vSl+i)}, 3, {T0}")
        A(f"v_lshrrev_b32 {T1}, 7, {T0}")
        A(f"v_mul_u32_u24 {T2}, 7282, {T1}\nv_lshrrev_b32 {T2}, 16, {T2}")
        A(f"v_mul_u32_u24 {T3}, 9, {T2}\nv_sub_u32 {T1}, {T1}, {T3}")
        A(f"v_lshlrev_b32 {T1}, 5, {T1}")
        A(f"v_lshlrev_b32 {T2}, 5, {T2}")
        A(f"v_and_b32 {T3}, 1, {T0}\nv_lshlrev_b32 {T3}, 4, {T3}\nv_add_u32 {T2}, {T2}, {T3}")
        A(f"v_bfe_u32 {T3}, {T0}, 1, 4\nv_add_u32 {T2}, {T2}, {T3}")
        A(f"v_mul_u32_u24 {T2}, 2304, {T2}\nv_add_u32 {T1}, {T1}, {T2}")
        A(f"v_bfe_u32 {T3}, {T0}, 5, 2\nv_lshlrev_b32 {T3}, 3, {T3}\nv_add_u32 {v(vOa+i)}, {T1}, {T3}")
    A("s_waitcnt vmcnt(0)")
    ST(15)
    def f2():
        A(f"s_lshl_b32 {s(sT0)}, {s(sType)}, 2\ns_add_u32 {s(sT0)}, {s(sT0)}, {s(sMT)}\ns_lshl_b32 {s(sT0)}, {s(sT0)}, 2\ns_add_u32 {s(sT0)}, {s(sT0)}, {s(sN4)}")
        A(f"s_lshl_b32 {s(sT0)}, {s(sT0)}, 7\ns_add_u32 {s(sT0)}, {s(sT0)}, {FLAG2}\ns_mov_b32 {s(sT1)}, {s(sJ)}")
    publish("h2", f2)
    def m2(): A(f"v_and_b32 {T2}, 7, {L}")
    await_flags("h2", m2)
    ST(16)
    DS(4)
    def group(i):
        base = 32 + i*16
        for jj in range(8):
            A(f"s_mov_b32 {s(sT0)}, {jj*1179648}")
            A(f"buffer_load_dwordx2 {v(base+2*jj,2)}, {v(vSl+i)}, {s(sO,4)}, {s(sT0)} offen sc1")
    def reduce(i, later):
        base = 32 + i*16; acc = 84
        for r in range(4): A(f"v_mov_b32 {v(acc+r)}, 0")
        for jj in range(8):
            A(f"s_waitcnt vmcnt({later + 7 - jj})")
            for d in range(2):
                src = base + 2*jj + d
                A(f"v_lshlrev_b32 {v(acc+4)}, 16, {v(src)}\nv_and_b32 {v(acc+5)}, 0xffff0000, {v(src)}")
                A(f"v_add_f32 {v(acc+2*d)}, {v(acc+2*d)}, {v(acc+4)}\nv_add_f32 {v(acc+2*d+1)}, {v(acc+2*d+1)}, {v(acc+5)}")
        A(f"v_cvt_pk_bf16_f32 {v(acc+6+2*i)}, {v(acc)}, {v(acc+1)}\nv_cvt_pk_bf16_f32 {v(acc+7+2*i)}, {v(acc+2)}, {v(acc+3)}")
    A(f"s_cmp_eq_u32 {s(sWv)}, 0\ns_cbranch_scc1 L_red3")
    group(0); group(1)
    reduce(0, 8); reduce(1, 0)
    for i in range(2): A(f"buffer_store_dwordx2 {v(90+2*i,2)}, {v(vOa+i)}, {s(sW,4)}, s42 offen")
    A("s_branch L_red_done")
    A("L_red3:")
    group(0); group(1); group(2)
    reduce(0, 16); reduce(1, 8); reduce(2, 0)
    for i in range(3): A(f"buffer_store_dwordx2 {v(90+2*i,2)}, {v(vOa+i)}, {s(sW,4)}, s42 offen")
    A("L_red_done:")
```

```python
from asmlib import *
import math

LOG2E = 1.4426950408889634
QSCALE = LOG2E / math.sqrt(128.0)
def f2u(x):
    import struct
    return struct.unpack("<I", struct.pack("<f", x))[0]

RING = 32768
KA, VA, KB, VB = 0, 8192, 16384, 24576
EXTRA = 131072
vTID, vLANE = 0, 1
vDMA = 2
vKa = 6
vVa = 14
vM = 22
vMT = 24
vL = 26
vT = 30
vNM = 38
vNon = 216
vQ = 40
vS = 104
vKF = 136
vVF = 168
vP = 200
NV = 216
vQacc = 104
vWF2 = 40
vWdma = 200
vXdma = 204
vWa = 205
vXa = 207
sK, sV, sX, sW, sO = 24, 28, 32, 36, 40
sWv, sHH, sKH, sRing, sKoff, sCnt = 44, 45, 46, 47, 48, 49
sT0, sT1, sT2, sT3 = 50, 51, 52, 53
sRot, sB, sH0, sType = 54, 55, 56, 57
sTile = 58
sXw, sXl = 59, 60
sC = 61
sNonce = 62
sM0, sM1 = 64, 66
sRet = 68

class VQ:
    def __init__(self, A): self.q = []; self.A = A
    def issue(self, tag): self.q.append(tag)
    def wait(self, *tags):
        idx = [i for i, t in enumerate(self.q) if t in tags]
        if not idx: return
        last = max(idx)
        n = len(self.q) - 1 - last
        assert n <= 63, n
        self.A(f"s_waitcnt vmcnt({n})")
        self.q = self.q[last + 1:]
    def wait_all(self):
        self.A("s_waitcnt vmcnt(0)"); self.q = []

def gen_k1(name, opt):
    A = Asm()
    fine = opt.get("fine", True)
    kvflag = opt.get("kvflag", "nt")
    wflag = opt.get("wflag", ""); xflag = opt.get("xflag", "")
    k0_k = opt.get("k0_k", 23); v0_k = opt.get("v0_k", 27)
    THR = opt.get("thr", 8.0)
    dbg = opt.get("dbg", None)
    stamp = opt.get("stamp", False)
    dbgst = opt.get("dbgstamp", False)
    def DS(i):
        if dbgst: A(f"s_memrealtime s[{70+2*i}:{71+2*i}]")
    fst = opt.get("fstamp", False)
    def ST(i):
        if fst and (fst is True or i in fst):
            A("s_memrealtime s[80:81]\ns_memtime s[82:83]\ns_waitcnt lgkmcnt(0)"); A(f"v_writelane_b32 v250, s80, {i}"); A(f"v_writelane_b32 v250, s82, {i+32}")
    A(f".globl {name}\n.p2align 8\n.type {name},@function\n{name}:")
    A(f"s_cmp_ge_u32 s2, 256\ns_cbranch_scc1 L_k1_done")
    if stamp: A("s_memrealtime s[70:71]")
    A("s_load_dwordx8 s[4:11], s[0:1], 0")
    A("s_load_dwordx8 s[12:19], s[0:1], 40")
    A("s_load_dwordx2 s[20:21], s[0:1], 96")
    A("s_load_dwordx2 s[22:23], s[0:1], 88")
    if opt.get("fused"):
        A("s_load_dwordx2 s[96:97], s[0:1], 32\ns_load_dwordx2 s[98:99], s[0:1], 72")
    A(f"v_lshrrev_b32 {v(vT)}, 6, v0")
    A(f"v_and_b32 {v(vLANE)}, 63, v0")
    A(f"v_readfirstlane_b32 {s(sWv)}, {v(vT)}")
    A(f"s_and_b32 {s(sT0)}, s2, 7")
    A(f"s_lshr_b32 {s(sT1)}, s2, 3")
    A(f"s_and_b32 {s(sType)}, {s(sT1)}, 1")
    A(f"s_lshr_b32 {s(sT1)}, {s(sT1)}, 1")
    A(f"s_and_b32 {s(sT2)}, {s(sT1)}, 1")
    A(f"s_lshr_b32 {s(sB)}, {s(sT1)}, 1")
    A(f"s_lshl_b32 {s(sH0)}, {s(sT0)}, 2")
    A(f"s_lshl_b32 {s(sT3)}, {s(sT2)}, 1")
    A(f"s_add_u32 {s(sH0)}, {s(sH0)}, {s(sT3)}")
    A(f"s_lshl_b32 {s(sT3)}, {s(sT2)}, 2")
    A(f"s_add_u32 {s(sRot)}, {s(sB)}, {s(sT3)}")
    A(f"s_and_b32 {s(sRot)}, {s(sRot)}, 7")
    A(f"s_and_b32 {s(sHH)}, {s(sWv)}, 1")
    A(f"s_lshr_b32 {s(sKH)}, {s(sWv)}, 1")
    A(f"s_lshl_b32 {s(sRing)}, {s(sWv)}, 15")
    A("s_waitcnt lgkmcnt(0)")
    A(f"s_cmp_eq_u32 {s(sType)}, 0")
    for i in range(8): A(f"s_cselect_b32 {s(4+i)}, {s(4+i)}, {s(12+i)}")
    if opt.get("fused"):
        A("s_cselect_b32 s96, s96, s98\ns_cselect_b32 s97, s97, s99")
    A(f"s_add_u32 {s(sT0)}, {s(sH0)}, {s(sHH)}")
    A(f"s_lshl_b32 {s(sT1)}, {s(sB)}, 5")
    A(f"s_add_u32 {s(sT1)}, {s(sT1)}, {s(sT0)}")
    A(f"s_lshr_b32 {s(sT2)}, {s(sH0)}, 1")
    A(f"s_lshl_b32 {s(sT3)}, {s(sB)}, 4")
    A(f"s_add_u32 {s(sT2)}, {s(sT2)}, {s(sT3)}")
    A(f"s_cmp_eq_u32 {s(sType)}, 0")
    A(f"s_cselect_b32 {s(sT2)}, {s(sT2)}, {s(sT1)}")
    A(f"s_lshl_b32 {s(sT2)}, {s(sT2)}, 18")
    for srd, p in ((sK, 6), (sV, 8)):
        A(f"s_add_u32 {s(srd)}, {s(p)}, {s(sT2)}")
        A(f"s_addc_u32 {s(srd+1)}, {s(p+1)}, 0")
        A(f"s_and_b32 {s(srd+1)}, {s(srd+1)}, 0xffff")
        A(f"s_mov_b32 {s(srd+2)}, 0x40000")
        A(f"s_mov_b32 {s(srd+3)}, 0x20000")
    fused = opt.get("fused", False)
    if fused:
        A(f"s_and_b32 {s(sT1)}, s2, 7\ns_lshl_b32 {s(sT1)}, {s(sT1)}, 1\ns_add_u32 {s(sT1)}, {s(sT1)}, {s(sType)}")
        A(f"s_lshl_b32 {s(sT1)}, {s(sT1)}, 3\ns_add_u32 {s(sT1)}, {s(sT1)}, {s(sB)}\ns_lshl_b32 {s(sT1)}, {s(sT1)}, 2")
        A(f"s_and_b32 {s(sT2)}, {s(sT0)}, 3\ns_add_u32 {s(sT1)}, {s(sT1)}, {s(sT2)}")
    else:
        A(f"s_lshl_b32 {s(sT2)}, {s(sType)}, 8")
        A(f"s_add_u32 {s(sT1)}, {s(sT1)}, {s(sT2)}")
    A(f"s_lshl_b32 {s(sT1)}, {s(sT1)}, 14")
    A(f"s_add_u32 {s(sO)}, s20, {s(sT1)}")
    A(f"s_addc_u32 {s(sO+1)}, s21, 0")
    A(f"s_and_b32 {s(sO+1)}, {s(sO+1)}, 0xffff")
    A(f"s_mov_b32 {s(sO+2)}, 16384")
    A(f"s_mov_b32 {s(sO+3)}, 0x20000")
    A(f"s_mul_i32 {s(sT1)}, {s(sB)}, 73728")
    A(f"s_add_u32 {s(sX)}, s4, {s(sT1)}")
    A(f"s_addc_u32 {s(sX+1)}, s5, 0")
    A(f"s_and_b32 {s(sX+1)}, {s(sX+1)}, 0xffff")
    A(f"s_mov_b32 {s(sX+2)}, 73728")
    A(f"s_mov_b32 {s(sX+3)}, 0x20000")
    A(f"s_lshl_b32 {s(sT1)}, {s(sT0)}, 8")
    A(f"s_lshl_b32 {s(sT2)}, {s(sKH)}, 7")
    A(f"s_add_u32 {s(sT1)}, {s(sT1)}, {s(sT2)}")
    A(f"s_add_u32 {s(sW)}, s10, {s(sT1)}")
    A(f"s_addc_u32 {s(sW+1)}, s11, 0")
    A(f"s_and_b32 {s(sW+1)}, {s(sW+1)}, 0xffff")
    A(f"s_sub_u32 {s(sW+2)}, 4718592, {s(sT1)}")
    A(f"s_mov_b32 {s(sW+3)}, 0x20000")
    L = v(vLANE); T0, T1, T2, T3 = (v(vT + i) for i in range(4))
    A(f"v_lshrrev_b32 {T0}, 4, {L}")
    A(f"s_lshl_b32 {s(sT1)}, {s(sHH)}, 2")
    A(f"v_or_b32 {T0}, {s(sT1)}, {T0}")
    A(f"v_and_b32 {T1}, 7, {L}")
    A(f"v_xor_b32 {T0}, {T0}, {T1}")
    A(f"v_lshlrev_b32 {T0}, 4, {T0}")
    A(f"v_lshrrev_b32 {T1}, 3, {L}")
    A(f"v_mul_u32_u24 {T2}, 1152, {T1}")
    A(f"v_add_u32 {v(vXdma)}, {T0}, {T2}")
    A(f"v_lshrrev_b32 {T0}, 4, {L}")
    A(f"v_and_b32 {T0}, 1, {T0}")
    A(f"v_lshlrev_b32 {T0}, 2, {T0}")
    A(f"v_and_b32 {T2}, 7, {L}")
    A(f"v_xor_b32 {T0}, {T0}, {T2}")
    A(f"v_lshlrev_b32 {T0}, 4, {T0}")
    A(f"v_lshlrev_b32 {T1}, 13, {T1}")
    A(f"v_add_u32 {v(vWdma)}, {T0}, {T1}")
    for n in range(1, 4): A(f"v_add_u32 {v(vWdma+n)}, {n*64512}, {v(vWdma)}")
    Q = VQ(A)
    if fused:
        A(f"s_or_b32 {s(sT0)}, s2, {s(sWv)}\ns_cmp_eq_u32 {s(sT0)}, 0\ns_cbranch_scc0 L_k1_nonce_done")
        A(f"s_memrealtime s[62:63]\ns_waitcnt lgkmcnt(0)\ns_or_b32 s62, s62, 1")
        A(f"v_mov_b32 {T0}, s62\nv_mov_b32 {T1}, 0")
        A(f"s_mov_b64 s[62:63], exec\ns_mov_b64 exec, 1")
        A(f"global_store_dword {T1}, {T0}, s[22:23] sc1")
        A("s_mov_b64 exec, s[62:63]")
        A("L_k1_nonce_done:")
    if fst: A("v_mov_b32 v250, 0")
    ST(0)
    XSLOT = [EXTRA + (i & 3)*8192 for i in range(9)]
    sWo = 4
    sTa, sTb = 13, 14
    def x_items(t):
        out = [("s", f"s_lshr_b32 {s(sTa)}, {s(sWo+t)}, 12"), ("s", f"s_add_u32 {s(sTa)}, {s(sTa)}, {s(sXw)}"),
               ("s", f"s_add_u32 m0, {s(sXl)}, {XSLOT[t]}"), ("s", f"s_add_u32 {s(sTb)}, {s(sTa)}, {4*9216}"),
               ("d", f"buffer_load_dwordx4 {v(vXdma)}, {s(sX,4)}, {s(sTa)} offen {xflag} lds", f"x{t}"),
               ("s", f"s_add_u32 m0, {s(sXl)}, {XSLOT[t] + 4096}"), ("s", "s_nop 0"),
               ("d", f"buffer_load_dwordx4 {v(vXdma)}, {s(sX,4)}, {s(sTb)} offen {xflag} lds", f"x{t}")]
        return out
    def emit_items(items):
        for it in items:
            A(it[1])
            if it[0] == "d": Q.issue(it[2])
    def issue_x(t): emit_items(x_items(t))
    WPOS = {0: KB, 1: KB+4096, 2: VB, 3: VB+4096, 4: KA, 5: KA+4096, 6: VA, 7: VA+4096, 8: KB, 9: KB+4096,
            10: KA, 11: KA+4096, 12: VA, 13: VA+4096, 14: VB, 15: VB+4096, 16: KB, 17: KB+4096}
    WISSUE = {4: 0, 5: 1, 6: 2, 7: 3, 8: 4, 9: 5, 14: 6, 15: 7, 10: 9, 11: 11, 12: 13, 13: 15, 16: 17, 17: 19}
    def w_items(hs):
        t = hs >> 1
        out = [("s", f"s_add_u32 m0, {s(sRing)}, {WPOS[hs]}")]
        if hs & 1: out.append(("s", f"s_add_u32 {s(sTa)}, {s(sWo+t)}, {32*8192}")); so = sTa
        else: out.append(("s", "s_nop 0")); so = sWo + t
        for n in range(4):
            out.append(("d", f"buffer_load_dwordx4 {v(vWdma+n)}, {s(sW,4)}, {s(so)} offen offset:{n*1024} {wflag} lds", f"w{hs}"))
        return out
    def issue_w(hs): emit_items(w_items(hs))
    def kv_items(srd, slot, tag):
        hs = 8192 if fine else 4096
        out = []
        for half in range(2):
            out.append(("s", f"s_add_u32 m0, {s(sRing)}, {slot + half*4096}"))
            out.append(("s", f"s_add_u32 {s(sT0)}, {s(sKoff)}, {half*hs}"))
            for n in range(4):
                out.append(("d", f"buffer_load_dwordx4 {v(vDMA+n)}, {s(srd,4)}, {s(sT0)} offen offset:{n*1024} {kvflag} lds", tag))
        return out
    def issue_kv(srd, slot, tag, q=None):
        hs = 8192 if fine else 4096
        for half in range(2):
            A(f"s_add_u32 m0, {s(sRing)}, {slot + half*4096}")
            A(f"s_add_u32 {s(sT0)}, {s(sKoff)}, {half*hs}")
            for n in range(4):
                A(f"buffer_load_dwordx4 {v(vDMA+n)}, {s(srd,4)}, {s(sT0)} offen offset:{n*1024} {kvflag} lds")
                if q is not None: q.issue(tag)
    A(f"s_mov_b32 {s(sC)}, {f2u(QSCALE):#x}")
    A(f"s_mul_i32 {s(sXw)}, {s(sWv)}, 9216")
    A(f"s_lshl_b32 {s(sXl)}, {s(sWv)}, 10")
    for t in range(9):
        A(f"s_add_u32 {s(sWo+t)}, {s(sRot)}, {t}\ns_cmp_ge_u32 {s(sWo+t)}, 9\ns_cselect_b32 {s(sT3)}, 9, 0\ns_sub_u32 {s(sWo+t)}, {s(sWo+t)}, {s(sT3)}\ns_lshl_b32 {s(sWo+t)}, {s(sWo+t)}, 19")
        if t == 0: issue_x(0); issue_w(0); issue_w(1)
    ST(20)
    A(f"v_lshrrev_b32 {T0}, 4, {L}")
    A(f"v_lshlrev_b32 {T1}, 2, {T0}")
    A(f"v_and_b32 {T2}, 15, {L}")
    A(f"v_xor_b32 {T1}, {T1}, {T2}")
    A(f"v_lshlrev_b32 {T0}, 8, {T0}")
    for n in range(4):
        A(f"v_xor_b32 {T2}, {n}, {T1}")
        A(f"v_lshlrev_b32 {T2}, 4, {T2}")
        A(f"v_add_u32 {v(vDMA+n)}, {T0}, {T2}")
        if fine and n: A(f"v_add_u32 {v(vDMA+n)}, {n*1024}, {v(vDMA+n)}")
    A(f"s_lshl_b32 {s(sKoff)}, {s(sKH)}, {10 if fine else 13}")
    A(f"v_and_b32 {T0}, 31, {L}")
    A(f"v_and_b32 {T1}, 3, {T0}")
    A(f"v_lshlrev_b32 {T1}, 2, {T1}")
    A(f"v_bfe_u32 {T2}, {T0}, 2, 2")
    A(f"v_or_b32 {T1}, {T1}, {T2}")
    A(f"v_lshrrev_b32 {T2}, 5, {L}")
    A(f"v_xor_b32 {T1}, {T1}, {T2}")
    A(f"v_lshlrev_b32 {T1}, 4, {T1}")
    A(f"v_lshlrev_b32 {T0}, 8, {T0}")
    A(f"v_add_u32 {T0}, {T0}, {T1}")
    A(f"v_add_u32 {v(vKa)}, {s(sRing)}, {T0}")
    for kk in range(1, 8): A(f"v_xor_b32 {v(vKa+kk)}, {kk<<5}, {v(vKa)}")
    A(f"v_bfe_u32 {T0}, {L}, 4, 1")
    A(f"v_lshlrev_b32 {T0}, 1, {T0}")
    A(f"v_bfe_u32 {T1}, {L}, 1, 1")
    A(f"v_or_b32 {T0}, {T0}, {T1}")
    A(f"v_bfe_u32 {T1}, {L}, 2, 2")
    A(f"v_lshlrev_b32 {T2}, 2, {T1}")
    A(f"v_xor_b32 {T0}, {T0}, {T2}")
    A(f"v_lshrrev_b32 {T2}, 5, {L}")
    A(f"v_xor_b32 {T0}, {T0}, {T2}")
    A(f"v_lshlrev_b32 {T0}, 4, {T0}")
    A(f"v_lshlrev_b32 {T2}, 2, {T2}")
    A(f"v_add_u32 {T1}, {T1}, {T2}")
    A(f"v_lshlrev_b32 {T1}, 8, {T1}")
    A(f"v_add_u32 {T0}, {T0}, {T1}")
    A(f"v_and_b32 {T1}, 1, {L}")
    A(f"v_lshlrev_b32 {T1}, 3, {T1}")
    A(f"v_add_u32 {T0}, {T0}, {T1}")
    A(f"v_add_u32 {T0}, {s(sRing)}, {T0}")
    for dt in range(4):
        for u in range(2):
            A(f"v_xor_b32 {v(vVa+dt*2+u)}, {(dt<<6)|(u<<5)}, {T0}")
            if u: A(f"v_add_u32 {v(vVa+dt*2+u)}, 2048, {v(vVa+dt*2+u)}")
    A(f"v_bfe_u32 {T0}, {L}, 4, 1")
    A(f"v_lshlrev_b32 {T0}, 1, {T0}")
    A(f"v_and_b32 {T1}, 1, {L}")
    A(f"v_or_b32 {T0}, {T0}, {T1}")
    A(f"v_bfe_u32 {T1}, {L}, 3, 1")
    A(f"v_lshlrev_b32 {T1}, 2, {T1}")
    A(f"v_xor_b32 {T0}, {T0}, {T1}")
    A(f"v_lshlrev_b32 {T0}, 4, {T0}")
    A(f"v_bfe_u32 {T1}, {L}, 2, 2")
    A(f"v_lshrrev_b32 {T2}, 5, {L}")
    A(f"v_lshlrev_b32 {T2}, 3, {T2}")
    A(f"v_add_u32 {T1}, {T1}, {T2}")
    A(f"v_lshlrev_b32 {T1}, 7, {T1}")
    A(f"v_add_u32 {T0}, {T0}, {T1}")
    A(f"v_bfe_u32 {T1}, {L}, 1, 1")
    A(f"v_lshlrev_b32 {T1}, 3, {T1}")
    A(f"v_add_u32 {T0}, {T0}, {T1}")
    A(f"v_add_u32 {T0}, {s(sRing)}, {T0}")
    A(f"v_mov_b32 {v(vWa)}, {T0}")
    A(f"v_xor_b32 {v(vWa+1)}, 64, {v(vWa)}")
    A(f"v_and_b32 {T0}, 31, {L}")
    A(f"v_bfe_u32 {T1}, {T0}, 1, 3")
    A(f"v_lshrrev_b32 {T2}, 5, {L}")
    A(f"v_xor_b32 {T1}, {T1}, {T2}")
    A(f"v_lshlrev_b32 {T1}, 4, {T1}")
    A(f"v_lshlrev_b32 {T0}, 7, {T0}")
    A(f"v_add_u32 {T0}, {T0}, {T1}")
    A(f"v_mov_b32 {v(vXa)}, {T0}")
    for kk in range(1, 4): A(f"v_xor_b32 {v(vXa+kk)}, {kk<<5}, {v(vXa)}")
    ST(23)
    if fused:
        import tail
        tail.emit_tail_setup(A, dict(sWv=sWv, sB=sB, sH0=sH0), opt, vT)
    for i in range(128): A(f"v_accvgpr_write_b32 {a(i)}, 0")
    for qh in range(2):
        A(f"v_mov_b32 {v(vL+2*qh)}, 0"); A(f"v_mov_b32 {v(vL+2*qh+1)}, 0")
    issue_x(1); issue_w(2); issue_w(3)
    if k0_k == -1: issue_kv(sK, KA, "K0", Q)
    if v0_k == -1: issue_kv(sV, VA, "V0", Q)
    ST(24)
    vXc = vXa + 4
    def rbuf(k): return vWF2 + (k % 3) * 16
    def read_list(k):
        hs, kl, t, kk = k >> 1, k & 1, k >> 2, k & 3
        buf = rbuf(k); out = []
        for dt in range(2):
            for u in range(2):
                out.append(f"ds_read_b64_tr_b16 {v(buf+dt*4+u*2,2)}, {v(vWa+dt)} offset:{WPOS[hs] + kl*2048 + u*512}")
        for qh in range(2):
            out.append(f"ds_read_b128 {v(buf+8+qh*4,4)}, {v(vXc+kk)} offset:{qh*4096}")
        return out
    def pre_reads(k):
        hs, t, kk = k >> 1, k >> 2, k & 3
        if kk == 0:
            Q.wait(f"x{t}", f"w{hs}")
            if not (opt.get("exp_nobar") and t > 0): A("s_barrier")
            for j in range(4): A(f"v_add_u32 {v(vXc+j)}, {XSLOT[t]}, {v(vXa+j)}")
        elif k & 1 == 0:
            Q.wait(f"w{hs}")
    bg = []
    def add(items, avail):
        for it in items: bg.append((it, avail))
    for gname, avail in [("w4",0),("x2",0),("w5",0),("w6",0),("x3",0),("w7",0),("w8",1),("w9",3),("x4",6),("w14",5),("w15",7),("w10",9),("x5",10),
                        ("w11",11),("w12",13),("x6",14),("w13",15),("w16",17),("x7",18),("w17",19),("x8",22),("K0",max(k0_k,23)),("V0",max(v0_k,27))]:
        if gname[0] == "w": add(w_items(int(gname[1:])), avail)
        elif gname[0] == "x": add(x_items(int(gname[1:])), avail)
        elif gname == "K0": add(kv_items(sK, KA, "K0"), avail)
        elif gname == "V0" and v0_k < 36: add(kv_items(sV, VA, "V0"), avail)
    maxd = opt.get("maxd", 3)
    pre_reads(0)
    ST(1)
    for i in read_list(0): A(i)
    for i in read_list(1): A(i)
    for k in range(36):
        rl = []
        if k + 2 < 36:
            pre_reads(k + 2); rl = read_list(k + 2)
        A(f"s_waitcnt lgkmcnt({6 if k + 1 < 36 else 0})")
        buf = rbuf(k); n = 0; nd = 0
        for dt in range(2):
            for qh in range(2):
                acc = v(vQacc + (dt*2+qh)*16, 16)
                c = "0" if k == 0 else acc
                A(f"v_mfma_f32_32x32x16_bf16 {acc}, {v(buf+dt*4,4)}, {v(buf+8+qh*4,4)}, {c}")
                did = False
                if nd < maxd and (n > 0 or maxd >= 4):
                    while bg and bg[0][1] <= k:
                        it = bg.pop(0)[0]
                        emit_items([it])
                        if it[0] == "d": did = True; nd += 1; break
                nr = [3, 1, 1, 1][n] if maxd < 4 else [2, 2, 1, 1][n]
                for i in rl[:nr]: A(i)
                rl = rl[nr:]
                n += 1
        if k & 3 == 3: ST(2 + (k >> 2))
    assert not bg, bg
    A("s_nop 7\ns_nop 5")
    ST(25)
    A(f"v_lshlrev_b32 {T0}, 4, {L}")
    A(f"v_add_u32 {T1}, {s(sRing)}, {T0}")
    A(f"v_add_u32 {T1}, {VB}, {T1}")
    A(f"s_lshl_b32 {s(sT1)}, {s(sHH)}, 15")
    A(f"v_add_u32 {T2}, {s(sT1)}, {T0}")
    A(f"v_add_u32 {T2}, {VB}, {T2}")
    A(f"v_add_u32 {T3}, {2*RING}, {T2}")
    for dt in range(2):
        for qh in range(2):
            acc = vQacc + (dt*2+qh)*16
            for m in range(2):
                dst = vVF + ((dt*2+m)*2+qh)*4
                for j in range(4): A(f"v_cvt_pk_bf16_f32 {v(dst+j)}, {v(acc+8*m+2*j)}, {v(acc+8*m+2*j+1)}")
    if v0_k == 36: issue_kv(sV, VA, "V0", Q)
    ST(27)
    for f in range(8): A(f"ds_write_b128 {T1}, {v(vVF+f*4,4)} offset:{f*1024}")
    A("s_waitcnt lgkmcnt(0)")
    A("s_barrier")
    ST(28)
    for half in range(2):
        for kl in range(4):
            for qh in range(2):
                kk = half*4 + kl
                A(f"ds_read_b128 {v(vQ+qh*32+kk*4,4)}, {T3 if half else T2} offset:{(kl*2+qh)*1024}")
        A("s_waitcnt lgkmcnt(0)")
    if dbg == "q":
        A(f"s_lshl_b32 {s(sT0)}, s2, 2"); A(f"s_add_u32 {s(sT0)}, {s(sT0)}, {s(sWv)}"); A(f"s_lshl_b32 {s(sT0)}, {s(sT0)}, 14")
        A(f"s_add_u32 {s(sT0)}, {s(sT0)}, 0x1000000")
        A(f"v_lshlrev_b32 {T0}, 4, {L}"); A(f"v_add_u32 {T0}, {s(sT0)}, {T0}")
        for f in range(16):
            A(f"global_store_dwordx4 {T0}, {v(vQ+f*4,4)}, s[20:21]"); A(f"v_add_u32 {T0}, 1024, {T0}")
        A("s_waitcnt vmcnt(0)")
    ST(19)
    DS(0)
    if stamp: A("s_memrealtime s[72:73]")
    A(f"s_add_u32 {s(sKoff)}, {s(sKoff)}, 16384")
    NW = 9 if (fused and opt.get("wowarm", True)) else 0
    def tile(par, kind, uid):
        ks, vs = (KA, VA) if par == 0 else (KB, VB)
        kw = {"first": 8, "mid": 24, "pen": 24 + NW, "last": 8 + NW + (1 if fused else 0)}[kind]
        vw = {"first": 16, "mid": 24, "pen": 16 + NW, "last": NW}[kind]
        A(f"s_waitcnt vmcnt({kw})")
        for kk in range(8): A(f"ds_read_b128 {v(vKF+kk*4,4)}, {v(vKa+kk)} offset:{ks}")
        for kk in range(8):
            A(f"s_waitcnt lgkmcnt({7-kk})")
            for qh in range(2):
                acc = v(vS+16*qh, 16)
                A(f"v_mfma_f32_32x32x16_bf16 {acc}, {v(vKF+kk*4,4)}, {v(vQ+qh*32+kk*4,4)}, {'0' if kk == 0 else acc}")
        if kind == "first": issue_kv(sK, KB, None); A("s_nop 1")
        elif kind == "mid": issue_kv(sK, ks, None); A("s_nop 1")
        else: A("s_nop 7\ns_nop 5")
        for qh in range(2):
            b = vS + 16*qh; t = v(vT+qh)
            A(f"v_max3_f32 {t}, {v(b)}, {v(b+1)}, {v(b+2)}")
            for i in range(3, 15, 2): A(f"v_max3_f32 {t}, {t}, {v(b+i)}, {v(b+i+1)}")
            A(f"v_max_f32 {t}, {t}, {v(b+15)}")
        if kind == "first":
            for qh in range(2): A(f"v_mov_b32 {v(vT+2+qh)}, {v(vT+qh)}")
            A("s_nop 1")
            for qh in range(2): A(f"v_permlane32_swap_b32 {v(vT+qh)}, {v(vT+2+qh)}")
            A("s_nop 1")
            for qh in range(2): A(f"v_max_f32 {v(vM+qh)}, {v(vT+qh)}, {v(vT+2+qh)}")
            for qh in range(2):
                A(f"v_add_f32 {v(vMT+qh)}, {f2u(THR/QSCALE):#x}, {v(vM+qh)}")
                A(f"v_mul_f32 {v(vNM+qh)}, {f2u(-QSCALE):#x}, {v(vM+qh)}")
        else:
            A(f"v_cmp_gt_f32 vcc, {v(vT)}, {v(vMT)}")
            A(f"v_cmp_gt_f32 {s(sM0,2)}, {v(vT+1)}, {v(vMT+1)}")
            A(f"s_or_b64 {s(sM0,2)}, {s(sM0,2)}, vcc")
            A(f"s_cbranch_scc0 L_k1_back{uid}")
            A(f"s_call_b64 {s(sRet,2)}, L_k1_rare")
            A(f"L_k1_back{uid}:")
        for qh in range(2):
            b = vS + 16*qh
            for i in range(16): A(f"v_fma_f32 {v(b+i)}, {v(b+i)}, {s(sC)}, {v(vNM+qh)}")
            for i in range(16): A(f"v_exp_f32 {v(b+i)}, {v(b+i)}")
        for qh in range(2):
            b = vS + 16*qh
            for i in range(16): A(f"v_add_f32 {v(vL+2*qh+(i&1))}, {v(vL+2*qh+(i&1))}, {v(b+i)}")
            for m in range(2):
                for j in range(4): A(f"v_cvt_pk_bf16_f32 {v(vP+qh*8+m*4+j)}, {v(b+8*m+2*j)}, {v(b+8*m+2*j+1)}")
        if kind == "first":
            issue_kv(sV, VB, None)
            A(f"s_add_u32 {s(sKoff)}, {s(sKoff)}, 16384")
        if fused and kind == "pen":
            A(f"v_mov_b32 {v(vNon+1)}, 0")
            A(f"global_load_dword {v(vNon)}, {v(vNon+1)}, s[22:23] sc1")
        if fused and kind in ("pen", "last"): vw += 1
        A(f"s_waitcnt vmcnt({vw})")
        for dt in range(4):
            for m in range(2):
                for u in range(2):
                    A(f"ds_read_b64_tr_b16 {v(vVF+(dt*2+m)*4+u*2,2)}, {v(vVa+dt*2+u)} offset:{vs + m*4096}")
        for dt in range(4):
            for m in range(2):
                A(f"s_waitcnt lgkmcnt({14-(dt*2+m)*2})")
                for qh in range(2):
                    acc = a((dt*2+qh)*16, 16)
                    A(f"v_mfma_f32_32x32x16_bf16 {acc}, {v(vVF+(dt*2+m)*4,4)}, {v(vP+qh*8+m*4,4)}, {acc}")
        if kind == "first":
            issue_kv(sK, KA, None); issue_kv(sV, VA, None)
            A(f"s_add_u32 {s(sKoff)}, {s(sKoff)}, 16384")
        elif kind == "mid":
            issue_kv(sV, vs, None)
            A(f"s_add_u32 {s(sKoff)}, {s(sKoff)}, 16384")
    if opt.get("ring2"):
        def tile2(kind, uid):
            A("s_waitcnt vmcnt(8)" if kind != "last" else f"s_waitcnt vmcnt({8 + (1 if fused else 0)})")
            for kk in range(8): A(f"ds_read_b128 {v(vKF+kk*4,4)}, {v(vKa+kk)} offset:{KA}")
            for kk in range(8):
                A(f"s_waitcnt lgkmcnt({7-kk})")
                for qh in range(2):
                    acc = v(vS+16*qh, 16)
                    A(f"v_mfma_f32_32x32x16_bf16 {acc}, {v(vKF+kk*4,4)}, {v(vQ+qh*32+kk*4,4)}, {'0' if kk == 0 else acc}")
            NW2 = 0
            alate = opt.get("alate") and kind == "mid"
            if alate:
                A(f"s_cmp_eq_u32 {s(sType)}, 0\ns_cbranch_scc1 L_k1_ke{uid}")
                issue_kv(sK, KA, None)
                A(f"L_k1_ke{uid}:\ns_nop 7\ns_nop 5")
            elif kind != "last": issue_kv(sK, KA, None); A("s_nop 1")
            else: A("s_nop 7\ns_nop 5")
            for qh in range(2):
                b = vS + 16*qh; t = v(vT+qh)
                A(f"v_max3_f32 {t}, {v(b)}, {v(b+1)}, {v(b+2)}")
                for i in range(3, 15, 2): A(f"v_max3_f32 {t}, {t}, {v(b+i)}, {v(b+i+1)}")
                A(f"v_max_f32 {t}, {t}, {v(b+15)}")
            if kind == "first":
                for qh in range(2): A(f"v_mov_b32 {v(vT+2+qh)}, {v(vT+qh)}")
                A("s_nop 1")
                for qh in range(2): A(f"v_permlane32_swap_b32 {v(vT+qh)}, {v(vT+2+qh)}")
                A("s_nop 1")
                for qh in range(2): A(f"v_max_f32 {v(vM+qh)}, {v(vT+qh)}, {v(vT+2+qh)}")
                for qh in range(2):
                    A(f"v_add_f32 {v(vMT+qh)}, {f2u(THR/QSCALE):#x}, {v(vM+qh)}")
                    A(f"v_mul_f32 {v(vNM+qh)}, {f2u(-QSCALE):#x}, {v(vM+qh)}")
            else:
                A(f"v_cmp_gt_f32 vcc, {v(vT)}, {v(vMT)}")
                A(f"v_cmp_gt_f32 {s(sM0,2)}, {v(vT+1)}, {v(vMT+1)}")
                A(f"s_or_b64 {s(sM0,2)}, {s(sM0,2)}, vcc")
                A(f"s_cbranch_scc0 L_k1_back{uid}")
                A(f"s_call_b64 {s(sRet,2)}, L_k1_rare")
                A(f"L_k1_back{uid}:")
            for qh in range(2):
                b = vS + 16*qh
                for i in range(16): A(f"v_fma_f32 {v(b+i)}, {v(b+i)}, {s(sC)}, {v(vNM+qh)}")
                for i in range(16): A(f"v_exp_f32 {v(b+i)}, {v(b+i)}")
            for qh in range(2):
                b = vS + 16*qh
                for i in range(16): A(f"v_add_f32 {v(vL+2*qh+(i&1))}, {v(vL+2*qh+(i&1))}, {v(b+i)}")
                for m in range(2):
                    for j in range(4): A(f"v_cvt_pk_bf16_f32 {v(vP+qh*8+m*4+j)}, {v(b+8*m+2*j)}, {v(b+8*m+2*j+1)}")
            if alate:
                A(f"s_cmp_eq_u32 {s(sType)}, 0\ns_cbranch_scc0 L_k1_kl{uid}")
                issue_kv(sK, KA, None)
                A(f"L_k1_kl{uid}:")
            if kind == "pen2":
                A(f"v_mov_b32 {v(vNon+1)}, 0")
                A(f"global_load_dword {v(vNon)}, {v(vNon+1)}, s[22:23] sc1")
                A("s_waitcnt vmcnt(9)")
            elif kind == "last": A(f"s_waitcnt vmcnt({NW2})")
            else: A("s_waitcnt vmcnt(8)")
            for dt in range(4):
                for m in range(2):
                    for u in range(2):
                        A(f"ds_read_b64_tr_b16 {v(vVF+(dt*2+m)*4+u*2,2)}, {v(vVa+dt*2+u)} offset:{VA + m*4096}")
            for dt in range(4):
                for m in range(2):
                    A(f"s_waitcnt lgkmcnt({14-(dt*2+m)*2})")
                    for qh in range(2):
                        acc = a((dt*2+qh)*16, 16)
                        A(f"v_mfma_f32_32x32x16_bf16 {acc}, {v(vVF+(dt*2+m)*4,4)}, {v(vP+qh*8+m*4,4)}, {acc}")
            if kind != "last":
                issue_kv(sV, VA, None)
                A(f"s_add_u32 {s(sKoff)}, {s(sKoff)}, 16384")
        tile2("first", 0)
        ST(29)
        A(f"s_mov_b32 {s(sTile)}, 1")
        A("L_k1_loop:")
        tile2("mid", 1)
        WT = opt.get("warmtile", 0)
        if WT:
            A(f"s_cmp_eq_u32 {s(sTile)}, {WT}\ns_cbranch_scc0 L_k1_nowarm")
            A(f"s_lshr_b32 {s(sT1)}, s2, 4\ns_lshl_b32 {s(sT1)}, {s(sT1)}, 2\ns_add_u32 {s(sT1)}, {s(sT1)}, {s(sWv)}\ns_mul_i32 {s(sT1)}, {s(sT1)}, 9216")
            A(f"v_lshlrev_b32 {v(vNon+2)}, 4, {L}")
            for i in range(9):
                A(f"buffer_load_dwordx4 v[220:223], {v(vNon+2)}, s[96:99], {s(sT1)} offen")
                A(f"s_add_u32 {s(sT1)}, {s(sT1)}, 1024")
            A("L_k1_nowarm:")
        A(f"s_add_u32 {s(sTile)}, {s(sTile)}, 1\ns_cmp_lt_u32 {s(sTile)}, 14\ns_cbranch_scc1 L_k1_loop")
        assert fused
        tile2("pen2", 3)
        tile2("last", 4)
        A("s_branch L_k1_epi")
    if not opt.get("ring2"):
      tile(0, "first", 0)
      ST(29)
    if not opt.get("ring2"):
      A(f"s_mov_b32 {s(sTile)}, 1")
      A("L_k1_loop:")
      tile(1, "mid", 1)
      A(f"s_cmp_eq_u32 {s(sTile)}, 13")
      A("s_cbranch_scc1 L_k1_tail")
      tile(0, "mid", 2)
    if not opt.get("ring2"):
      A(f"s_add_u32 {s(sTile)}, {s(sTile)}, 2")
      A("s_branch L_k1_loop")
      A("L_k1_tail:")
      if NW:
          A(f"v_lshlrev_b32 {v(vNon+2)}, 4, {L}")
          for i in range(NW):
              A(f"buffer_load_dwordx4 v[220:223], {v(vNon+2)}, s[96:99], s100 offen {opt.get('wowarmflag','')}")
              A("s_add_u32 s100, s100, 1024")
      tile(0, "pen", 3)
      tile(1, "last", 4)
      A("s_branch L_k1_epi")
    A("L_k1_rare:")
    for qh in range(2): A(f"v_mov_b32 {v(vT+2+qh)}, {v(vT+qh)}")
    A("s_nop 1")
    for qh in range(2): A(f"v_permlane32_swap_b32 {v(vT+qh)}, {v(vT+2+qh)}")
    A("s_nop 1")
    for qh in range(2):
        A(f"v_max3_f32 {v(vT+qh)}, {v(vT+qh)}, {v(vT+2+qh)}, {v(vM+qh)}")
    for qh in range(2):
        A(f"v_sub_f32 {v(vT+2+qh)}, {v(vM+qh)}, {v(vT+qh)}")
    for qh in range(2): A(f"v_mul_f32 {v(vT+2+qh)}, {s(sC)}, {v(vT+2+qh)}")
    for qh in range(2): A(f"v_exp_f32 {v(vT+2+qh)}, {v(vT+2+qh)}")
    for qh in range(2):
        A(f"v_mov_b32 {v(vM+qh)}, {v(vT+qh)}")
        A(f"v_add_f32 {v(vMT+qh)}, {f2u(THR/QSCALE):#x}, {v(vT+qh)}")
        A(f"v_mul_f32 {v(vNM+qh)}, {f2u(-QSCALE):#x}, {v(vT+qh)}")
    for qh in range(2):
        for j in range(2): A(f"v_mul_f32 {v(vL+2*qh+j)}, {v(vL+2*qh+j)}, {v(vT+2+qh)}")
    for dt in range(4):
        for qh in range(2):
            base = (dt*2+qh)*16
            for r0 in range(0, 16, 4):
                for r in range(4): A(f"v_accvgpr_read_b32 {v(vT+4+r)}, {a(base+r0+r)}")
                for r in range(4): A(f"v_mul_f32 {v(vT+4+r)}, {v(vT+4+r)}, {v(vT+2+qh)}")
                for r in range(4): A(f"v_accvgpr_write_b32 {a(base+r0+r)}, {v(vT+4+r)}")
    A("s_nop 1")
    A(f"s_setpc_b64 {s(sRet,2)}")
    A("L_k1_epi:")
    ST(30)
    DS(1)
    if fused:
        A("s_waitcnt vmcnt(0)")
        A(f"s_mov_b32 {s(sT2)}, {1 << 17}")
        A("L_k1_nonce_poll:")
        A(f"v_readfirstlane_b32 {s(sNonce)}, {v(vNon)}")
        A(f"s_cmp_lg_u32 {s(sNonce)}, 0\ns_cbranch_scc1 L_k1_nonce_ok")
        A(f"global_load_dword {v(vNon)}, {v(vNon+1)}, s[22:23] sc1\ns_waitcnt vmcnt(0)")
        A(f"s_sub_u32 {s(sT2)}, {s(sT2)}, 1\ns_cmp_lg_u32 {s(sT2)}, 0\ns_cbranch_scc1 L_k1_nonce_poll")
        A("L_k1_nonce_ok:")
    if stamp: A("s_memrealtime s[74:75]")
    MM = vT
    for qh in range(2):
        A(f"v_add_f32 {v(vL+2*qh)}, {v(vL+2*qh)}, {v(vL+2*qh+1)}")
        A(f"v_mov_b32 {v(vL+2*qh+1)}, {v(vL+2*qh)}")
    A("s_nop 1")
    for qh in range(2): A(f"v_permlane32_swap_b32 {v(vL+2*qh)}, {v(vL+2*qh+1)}")
    A("s_nop 1")
    for qh in range(2):
        A(f"v_add_f32 {v(MM+2+qh)}, {v(vL+2*qh)}, {v(vL+2*qh+1)}")
        A(f"v_mov_b32 {v(MM+qh)}, {v(vM+qh)}")
    A(f"v_lshlrev_b32 {v(vKa)}, 4, {L}")
    A(f"s_xor_b32 {s(sT0)}, {s(sRing)}, {2*RING}")
    A(f"v_add_u32 {v(vKa+1)}, {s(sT0)}, {v(vKa)}")
    A(f"v_add_u32 {v(vKa)}, {s(sRing)}, {v(vKa)}")
    A(f"ds_write_b128 {v(vKa)}, {v(MM,4)} offset:16384")
    A(f"v_bfe_u32 {v(vKa+2)}, {L}, 4, 1"); A(f"v_lshlrev_b32 {v(vKa+2)}, 10, {v(vKa+2)}")
    A(f"v_lshrrev_b32 {v(vKa+3)}, 5, {L}"); A(f"v_lshlrev_b32 {v(vKa+3)}, 8, {v(vKa+3)}")
    A(f"v_add_u32 {v(vKa+2)}, {v(vKa+2)}, {v(vKa+3)}")
    A(f"v_and_b32 {v(vKa+3)}, 15, {L}"); A(f"v_lshlrev_b32 {v(vKa+3)}, 4, {v(vKa+3)}")
    A(f"v_add_u32 {v(vKa+2)}, {v(vKa+2)}, {v(vKa+3)}")
    A(f"s_cmp_eq_u32 {s(sKH)}, 0")
    A("s_cbranch_scc0 L_k1_epi1")
    for kh in range(2):
        if kh == 1: A("L_k1_epi1:")
        keep = [2*kh, 2*kh+1]; send = [2*(1-kh), 2*(1-kh)+1]
        f = 0
        for dt in send:
            for qh in range(2):
                for rq in range(4):
                    A(f"ds_write_b128 {v(vKa)}, {a((dt*2+qh)*16+4*rq,4)} offset:{f*1024}"); f += 1
        ST(21)
        OWN, OTH, PK = vQ, vS, vVF
        for dl, dt in enumerate(keep):
            for qh in range(2):
                for r in range(16): A(f"v_accvgpr_read_b32 {v(OWN+(dl*2+qh)*16+r)}, {a((dt*2+qh)*16+r)}")
        A("s_waitcnt lgkmcnt(0)")
        ST(23)
        A("s_barrier")
        ST(24)
        A(f"ds_read_b128 {v(MM+4,4)}, {v(vKa+1)} offset:16384")
        for f in range(16): A(f"ds_read_b128 {v(OTH+f*4,4)}, {v(vKa+1)} offset:{f*1024}")
        A("s_waitcnt lgkmcnt(15)")
        FS, FO = vP, vP + 2
        for qh in range(2):
            A(f"v_max_f32 {v(vP+4+qh)}, {v(MM+qh)}, {v(MM+4+qh)}")
        for qh in range(2):
            A(f"v_sub_f32 {v(FS+qh)}, {v(MM+qh)}, {v(vP+4+qh)}")
            A(f"v_sub_f32 {v(FO+qh)}, {v(MM+4+qh)}, {v(vP+4+qh)}")
        for qh in range(2):
            A(f"v_mul_f32 {v(FS+qh)}, {s(sC)}, {v(FS+qh)}")
            A(f"v_mul_f32 {v(FO+qh)}, {s(sC)}, {v(FO+qh)}")
        for qh in range(2):
            A(f"v_exp_f32 {v(FS+qh)}, {v(FS+qh)}")
            A(f"v_exp_f32 {v(FO+qh)}, {v(FO+qh)}")
        A("s_nop 0")
        for qh in range(2):
            A(f"v_mul_f32 {v(vP+4+qh)}, {v(MM+2+qh)}, {v(FS+qh)}")
            A(f"v_fma_f32 {v(vP+4+qh)}, {v(MM+6+qh)}, {v(FO+qh)}, {v(vP+4+qh)}")
        for qh in range(2): A(f"v_rcp_f32 {v(vP+4+qh)}, {v(vP+4+qh)}")
        A("s_nop 0")
        for qh in range(2):
            A(f"v_mul_f32 {v(vP+8+2*qh)}, {v(FS+qh)}, {v(vP+4+qh)}")
            A(f"v_mul_f32 {v(vP+9+2*qh)}, {v(FO+qh)}, {v(vP+4+qh)}")
        ST(25)
        for dl, dt in enumerate(keep):
            A(f"s_mov_b32 {s(sT0)}, {dt*4096}")
            for qh in range(2):
                A(f"s_waitcnt lgkmcnt({12 - 4*(dl*2+qh)})")
                oth = OTH + (dl*2+qh)*16; own = OWN + (dl*2+qh)*16; fp = v(vP+8+2*qh, 2)
                if opt.get("pk", False):
                    for r in range(0, 16, 2): A(f"v_pk_mul_f32 {v(oth+r,2)}, {v(oth+r,2)}, {fp} op_sel:[0,1] op_sel_hi:[1,1]")
                    for r in range(0, 16, 2): A(f"v_pk_fma_f32 {v(oth+r,2)}, {v(own+r,2)}, {fp}, {v(oth+r,2)} op_sel:[0,0,0] op_sel_hi:[1,0,1]")
                else:
                    for r in range(16): A(f"v_mul_f32 {v(oth+r)}, {v(oth+r)}, {v(vP+9+2*qh)}")
                    for r in range(16): A(f"v_fmac_f32 {v(oth+r)}, {v(own+r)}, {v(vP+8+2*qh)}")
                for m in range(2):
                    dst = PK + ((dl*2+qh)*2+m)*4
                    for j in range(4): A(f"v_cvt_pk_bf16_f32 {v(dst+j)}, {v(oth+8*m+2*j)}, {v(oth+8*m+2*j+1)}")
                    A(f"buffer_store_dwordx4 {v(dst,4)}, {v(vKa+2)}, {s(sO,4)}, {s(sT0)} offen offset:{qh*2048+m*512} {'sc1' if fused else opt.get('oflag','')}")
        ST(26)
        A("s_branch L_k1_fin")
    A("L_k1_fin:")
    if fused:
        from tail import emit_tail
        emit_tail(A, dict(sWv=sWv, sB=sB, sH0=sH0, sType=sType, sNonce=sNonce, sRing=sRing), opt, VQ, ST, DS)
        if dbgst:
            A("s_waitcnt vmcnt(0)")
            DS(5)
            A("s_waitcnt lgkmcnt(0)")
            A(f"s_cmp_lg_u32 {s(sWv)}, 0\ns_cbranch_scc1 L_dst_skip")
            A("s_mov_b64 exec, 1")
            for i in range(6):
                A(f"s_sub_u32 {s(sT0)}, s{70+2*i}, {s(sNonce)}\nv_mov_b32 v2, {s(sT0)}\nv_mov_b32 v3, {4+4*i}")
                A("global_atomic_umax v3, v2, s[22:23]")
            A("s_waitcnt vmcnt(0)")
            A("L_dst_skip:")
    ST(31)
    if fst:
        A(f"s_lshl_b32 {s(sT0)}, s2, 2"); A(f"s_add_u32 {s(sT0)}, {s(sT0)}, {s(sWv)}"); A(f"s_lshl_b32 {s(sT0)}, {s(sT0)}, 8")
        A(f"s_add_u32 {s(sT0)}, {s(sT0)}, 0x2200000")
        A(f"v_lshlrev_b32 v5, 2, {L}\nv_add_u32 v5, {s(sT0)}, v5")
        A("global_store_dword v5, v250, s[20:21]")
    if stamp:
        A("s_waitcnt vmcnt(0)")
        A("s_memrealtime s[76:77]")
        A("s_waitcnt lgkmcnt(0)")
        A(f"s_lshl_b32 {s(sT0)}, s2, 2"); A(f"s_add_u32 {s(sT0)}, {s(sT0)}, {s(sWv)}"); A(f"s_lshl_b32 {s(sT0)}, {s(sT0)}, 4")
        A(f"s_add_u32 {s(sT0)}, {s(sT0)}, 0x2000000")
        A(f"v_mov_b32 v8, s70\nv_mov_b32 v9, s72\nv_mov_b32 v10, s74\nv_mov_b32 v11, s76\nv_mov_b32 v5, {s(sT0)}")
        A(f"v_cmp_eq_u32 vcc, 0, {L}\ns_and_saveexec_b64 s[80:81], vcc")
        A("global_store_dwordx4 v5, v[8:11], s[20:21]")
    A("L_k1_done:")
    A("s_endpgm")
    return A.text(), kd(name, 512, 102, 256)
```

```python
from asmlib import *
OBUF = 0x0
PART = 0x1000000
FLAG1 = 0x3000000
FLAG2 = 0x3010000
SPIN = 1 << 17

sJ, sMT, sN4, sRot, sWG, sWO = 88, 89, 90, 91, 92, 96
vWd = 224
WOSLOT = {0: 23552, 1: 0, 2: 9216, 3: 23552}

def emit_tail_setup(A, R, opt, vtmp):
    sWv, sB, sH0 = R["sWv"], R["sB"], R["sH0"]
    sT0, sT1, sT2 = 50, 51, 52
    L = v(1); T0, T1, T2 = (v(vtmp+i) for i in range(3))
    A(f"s_and_b32 {s(sJ)}, s2, 7\ns_lshr_b32 {s(sMT)}, {s(sB)}, 1")
    A(f"s_and_b32 {s(sT0)}, {s(sB)}, 1\ns_lshl_b32 {s(sT0)}, {s(sT0)}, 1\ns_bfe_u32 {s(sT1)}, {s(sH0)}, 0x10001\ns_add_u32 {s(sN4)}, {s(sT0)}, {s(sT1)}")
    A(f"s_mul_i32 {s(sT0)}, {s(sJ)}, {512*1152}\ns_mul_i32 {s(sT1)}, {s(sN4)}, 288\ns_add_u32 {s(sT0)}, {s(sT0)}, {s(sT1)}")
    A(f"s_add_u32 {s(sWO)}, {s(sWO)}, {s(sT0)}\ns_addc_u32 {s(sWO+1)}, {s(sWO+1)}, 0\ns_and_b32 {s(sWO+1)}, {s(sWO+1)}, 0xffff")
    A(f"s_sub_u32 {s(sWO+2)}, 4718592, {s(sT0)}\ns_mov_b32 {s(sWO+3)}, 0x20000")
    A(f"s_add_u32 {s(sRot)}, {s(sMT)}, {s(sN4)}\ns_and_b32 {s(sRot)}, {s(sRot)}, 3\ns_lshl_b32 {s(sRot)}, {s(sRot)}, 2")
    for g in range(4):
        A(f"s_add_u32 {s(sT2)}, {s(sRot)}, {4*g}\ns_add_u32 {s(sT2)}, {s(sT2)}, {s(sWv)}\ns_and_b32 {s(sT2)}, {s(sT2)}, 15")
        A(f"s_mul_i32 {s(sWG+g)}, {s(sT2)}, 36864")
    for i in range(9):
        A(f"v_add_u32 {T0}, {i*64}, {L}")
        A(f"v_mul_u32_u24 {T1}, 3641, {T0}\nv_lshrrev_b32 {T1}, 16, {T1}")
        A(f"v_mul_u32_u24 {T2}, 18, {T1}\nv_sub_u32 {T2}, {T0}, {T2}")
        A(f"v_mul_u32_u24 {T1}, 1152, {T1}\nv_lshlrev_b32 {T2}, 4, {T2}\nv_add_u32 {v(vWd+i)}, {T1}, {T2}")

def wo_items(g, sRing, opt):
    out = []
    for i in range(9):
        out.append(("s", f"s_add_u32 m0, {s(sRing)}, {WOSLOT[g] + i*1024}"))
        out.append(("s", "s_nop 0"))
        out.append(("d", f"buffer_load_dwordx4 {v(vWd+i)}, {s(sWO,4)}, {s(sWG+g)} offen {opt.get('woflag', '')} lds", f"wo{g}"))
    return out

def emit_tail(A, R, opt, VQ, ST, DS):
    sWv, sB, sH0, sType, sNonce, sRing = R["sWv"], R["sB"], R["sH0"], R["sType"], R["sNonce"], R["sRing"]
    vL, vT = 1, 2
    vWa, vOl, vAF, vAcc, vOF = 19, 20, 24, 48, 120
    sW, sO, sP = 24, 28, 32
    sT0, sT1, sT2, sT3 = 50, 51, 52, 53
    L = v(vL); T0, T1, T2, T3 = (v(vT+i) for i in range(4))
    Q = VQ(A)
    for i in range(8): Q.issue("ostore")
    A("s_load_dwordx2 s[8:9], s[0:1], 80")
    A(f"v_lshlrev_b32 {v(vOl)}, 4, {L}")
    def emit(items):
        for it in items:
            A(it[1])
            if it[0] == "d": Q.issue(it[2])
    emit(wo_items(0, sRing, opt))
    ST(17)
    A(f"s_lshl_b32 {s(sT0)}, {s(sJ)}, 1\ns_add_u32 {s(sT0)}, {s(sT0)}, {s(sType)}")
    A(f"s_lshl_b32 {s(sT1)}, {s(sT0)}, 3\ns_lshl_b32 {s(sT2)}, {s(sMT)}, 1\ns_add_u32 {s(sT1)}, {s(sT1)}, {s(sT2)}")
    A(f"s_lshr_b32 {s(sT2)}, {s(sWv)}, 1\ns_add_u32 {s(sT1)}, {s(sT1)}, {s(sT2)}\ns_lshl_b32 {s(sT1)}, {s(sT1)}, 16")
    A(f"s_and_b32 {s(sT2)}, {s(sWv)}, 1\ns_lshl_b32 {s(sT2)}, {s(sT2)}, 11\ns_add_u32 {s(sT1)}, {s(sT1)}, {s(sT2)}")
    A(f"s_add_u32 {s(sO)}, s20, {s(sT1)}\ns_addc_u32 {s(sO+1)}, s21, 0\ns_and_b32 {s(sO+1)}, {s(sO+1)}, 0xffff")
    A(f"s_mov_b32 {s(sO+2)}, 0x10000\ns_mov_b32 {s(sO+3)}, 0x20000")
    A(f"s_lshl_b32 {s(sT0)}, {s(sT0)}, 2\ns_add_u32 {s(sT0)}, {s(sT0)}, {s(sMT)}\ns_lshl_b32 {s(sT0)}, {s(sT0)}, 2\ns_add_u32 {s(sT0)}, {s(sT0)}, {s(sN4)}")
    PW = 12288 if opt.get("tag2", True) else 9216
    A(f"s_lshl_b32 {s(sT0)}, {s(sT0)}, 2\ns_add_u32 {s(sT0)}, {s(sT0)}, {s(sWv)}\ns_mul_i32 {s(sT0)}, {s(sT0)}, {PW}\ns_add_u32 {s(sT0)}, {s(sT0)}, {PART}")
    A(f"s_add_u32 {s(sP)}, s20, {s(sT0)}\ns_addc_u32 {s(sP+1)}, s21, 0\ns_and_b32 {s(sP+1)}, {s(sP+1)}, 0xffff")
    A(f"s_mov_b32 {s(sP+2)}, {PW}\ns_mov_b32 {s(sP+3)}, 0x20000")
    A(f"v_lshrrev_b32 {T0}, 5, {L}\nv_lshlrev_b32 {T0}, 4, {T0}\nv_bfe_u32 {T1}, {L}, 4, 1\nv_lshlrev_b32 {T1}, 2, {T1}\nv_add_u32 {T0}, {T0}, {T1}")
    A(f"v_bfe_u32 {T1}, {L}, 2, 2\nv_add_u32 {T0}, {T0}, {T1}\nv_mul_u32_u24 {T0}, 288, {T0}\nv_and_b32 {T1}, 3, {L}\nv_lshlrev_b32 {T1}, 3, {T1}\nv_add_u32 {v(vWa)}, {T0}, {T1}")
    A(f"v_add_u32 {v(vWa+2)}, 0x10000, {v(vWa)}\nv_add_u32 {v(vWa+3)}, 0x20000, {v(vWa)}")
    for i in range(72): A(f"v_mov_b32 {v(vAcc+i)}, 0")
    def publish(tag, flagoff_code):
        A("s_barrier")
        flagoff_code()
        A(f"s_mov_b32 s43, {s(sT0)}")
        A(f"s_cmp_lg_u32 {s(sWv)}, 0\ns_cbranch_scc1 L_{tag}_nopub")
        A(f"s_lshl_b32 {s(sT1)}, {s(sT1)}, 2\ns_add_u32 {s(sT1)}, {s(sT1)}, {s(sT0)}")
        A(f"v_mov_b32 {T0}, {s(sT1)}\nv_mov_b32 {T1}, {s(sNonce)}")
        A(f"s_mov_b64 s[40:41], exec\ns_mov_b64 exec, 1")
        A(f"global_store_dword {T0}, {T1}, s[20:21] sc1")
        A("s_mov_b64 exec, s[40:41]")
        A(f"L_{tag}_nopub:")
    def await_flags(tag, lane_member_code):
        lane_member_code()
        A(f"v_lshlrev_b32 {T2}, 2, {T2}\nv_add_u32 {T2}, s43, {T2}")
        A(f"s_mov_b32 {s(sT2)}, {SPIN}")
        A(f"global_load_dword {T3}, {T2}, s[20:21] sc1")
        A(f"L_{tag}_poll:")
        A(f"global_load_dword {T1}, {T2}, s[20:21] sc1")
        A("s_waitcnt vmcnt(1)")
        A(f"v_cmp_ne_u32 vcc, {s(sNonce)}, {T3}")
        A(f"s_cbranch_vccz L_{tag}_ok")
        A(f"global_load_dword {T3}, {T2}, s[20:21] sc1")
        A("s_waitcnt vmcnt(1)")
        A(f"v_cmp_ne_u32 vcc, {s(sNonce)}, {T1}")
        A(f"s_cbranch_vccz L_{tag}_ok")
        A(f"s_sub_u32 {s(sT2)}, {s(sT2)}, 1\ns_cmp_lg_u32 {s(sT2)}, 0\ns_cbranch_scc1 L_{tag}_poll")
        A(f"L_{tag}_ok:")
        Q.q = ["poll"]
    sR = 64
    def hop2_setup():
        TILE = 49152
        A(f"s_lshl_b32 {s(sT0)}, {s(sType)}, 2\ns_add_u32 {s(sT0)}, {s(sT0)}, {s(sMT)}\ns_lshl_b32 {s(sT0)}, {s(sT0)}, 2\ns_add_u32 {s(sT0)}, {s(sT0)}, {s(sN4)}")
        A(f"s_mul_i32 {s(sT0)}, {s(sT0)}, {TILE}\ns_add_u32 {s(sT0)}, {s(sT0)}, {PART}")
        A(f"s_add_u32 {s(sR)}, s20, {s(sT0)}\ns_addc_u32 {s(sR+1)}, s21, 0\ns_and_b32 {s(sR+1)}, {s(sR+1)}, 0xffff")
        A(f"s_mov_b32 {s(sR+2)}, {7*32*TILE + TILE}\ns_mov_b32 {s(sR+3)}, 0x20000")
        A(f"s_mov_b32 {s(sW)}, s8\ns_and_b32 {s(sW+1)}, s9, 0xffff\ns_mov_b32 {s(sW+2)}, 1179648\ns_mov_b32 {s(sW+3)}, 0x20000")
        A(f"s_mul_i32 s42, {s(sMT)}, {128*2304}\ns_mul_i32 {s(sT1)}, {s(sType)}, 1152\ns_add_u32 s42, s42, {s(sT1)}\ns_mul_i32 {s(sT1)}, {s(sN4)}, 288\ns_add_u32 s42, s42, {s(sT1)}")
        vOa = 23
        A(f"v_and_b32 {T0}, 15, {L}\nv_mul_u32_u24 {T0}, 2304, {T0}\nv_lshrrev_b32 {T1}, 4, {L}\nv_lshlrev_b32 {T1}, 3, {T1}\nv_add_u32 {v(vOa)}, {T0}, {T1}")
        sGI, sOo = 10, 4
        for i in range(2):
            A(f"s_mul_i32 {s(sGI+i)}, {s(sJ)}, 6\ns_add_u32 {s(sGI+i)}, {s(sGI+i)}, {s(sWv)}")
            if i: A(f"s_add_u32 {s(sGI+i)}, {s(sGI+i)}, 4")
            A(f"s_mul_i32 {s(sT0)}, {s(sGI+i)}, 5462\ns_lshr_b32 {s(sT0)}, {s(sT0)}, 16")
            A(f"s_mul_i32 {s(sT1)}, {s(sT0)}, 12\ns_sub_u32 {s(sT1)}, {s(sGI+i)}, {s(sT1)}\ns_mul_i32 {s(sT1)}, {s(sT1)}, 3")
            A(f"s_mul_i32 {s(sT0)}, {s(sT0)}, {32*2304}\ns_add_u32 {s(sT0)}, {s(sT0)}, s42")
            for k in range(3):
                o = sOo + 3*i + k
                A(f"s_add_u32 {s(sT2)}, {s(sT1)}, {k}")
                A(f"s_lshr_b32 {s(sT3)}, {s(sT2)}, 2\ns_lshl_b32 {s(sT3)}, {s(sT3)}, 5\ns_add_u32 {s(o)}, {s(sT0)}, {s(sT3)}")
                A(f"s_bfe_u32 {s(sT3)}, {s(sT2)}, 0x10001\ns_mul_i32 {s(sT3)}, {s(sT3)}, {16*2304}\ns_add_u32 {s(o)}, {s(o)}, {s(sT3)}")
                A(f"s_and_b32 {s(sT3)}, {s(sT2)}, 1\ns_lshl_b32 {s(sT3)}, {s(sT3)}, 2\ns_add_u32 {s(o)}, {s(o)}, {s(sT3)}")
            A(f"s_lshl_b32 {s(sGI+i)}, {s(sGI+i)}, 10")
        return TILE, vOa, sGI, sOo
    ST(11)
    Q.wait("ostore")
    ST(12)
    def f1():
        A(f"s_lshl_b32 {s(sT0)}, {s(sJ)}, 1\ns_add_u32 {s(sT0)}, {s(sT0)}, {s(sType)}\ns_lshl_b32 {s(sT0)}, {s(sT0)}, 2\ns_add_u32 {s(sT0)}, {s(sT0)}, {s(sMT)}")
        A(f"s_lshl_b32 {s(sT0)}, {s(sT0)}, 7\ns_add_u32 {s(sT0)}, {s(sT0)}, {FLAG1}\ns_mov_b32 {s(sT1)}, {s(sN4)}")
    publish("h1", f1)
    emit(wo_items(1, sRing, opt))
    emit(wo_items(2, sRing, opt))
    if opt.get("tag2", True):
        A("s_waitcnt lgkmcnt(0)")
        TILE, vOa, sGI, sOo = hop2_setup()
    def m1():
        A(f"s_and_b32 {s(sT0)}, {s(sWv)}, 2\nv_and_b32 {T2}, 1, {L}\nv_or_b32 {T2}, {s(sT0)}, {T2}")
    await_flags("h1", m1)
    ST(13)
    DS(2)
    def o_items(st):
        out = [("s", f"s_add_u32 {s(sT0)}, {s(sRot)}, {st}"), ("s", f"s_and_b32 {s(sT0)}, {s(sT0)}, 15"), ("s", f"s_lshl_b32 {s(sT0)}, {s(sT0)}, 12")]
        for blk in range(2):
            out.append(("d", f"buffer_load_dwordx4 {v(vOF+(st*2+blk)*4,4)}, {v(vOl)}, {s(sO,4)}, {s(sT0)} offen offset:{blk*1024} sc1", f"o{st}"))
        return out
    for st in range(4): emit(o_items(st))
    def wa(off):
        if off < 0x10000: return v(vWa), off
        if off < 0x20000: return v(vWa+2), off - 0x10000
        return v(vWa+3), off - 0x20000
    NB = 5
    A("s_barrier")
    seq = [(st, nt) for st in range(16) for nt in range(9)]
    def rd(idx):
        st, nt = seq[idx]; buf = vAF + (idx % NB) * 4
        for u in range(2):
            reg, imm = wa((st & 3)*32768 + WOSLOT[st >> 2] + u*8*288 + nt*32)
            A(f"ds_read_b64_tr_b16 {v(buf+u*2,2)}, {reg} offset:{imm}")
    bg = []
    for i in range(NB - 1): rd(i)
    for idx, (st, nt) in enumerate(seq):
        if nt == 0:
            if st % 4 == 0 and st < 12:
                for s2_ in range(st + 4, st + 8): bg += o_items(s2_)
            if st == 4:
                A("s_barrier")
                bg = wo_items(3, sRing, opt) + bg
            Q.wait(f"o{st}")
        if (st, nt) == (11, 9 - (NB - 1)):
            Q.wait("wo3"); A("s_barrier")
        left = min(len(seq) - 1 - idx, NB - 2)
        A(f"s_waitcnt lgkmcnt({2*left})")
        buf = vAF + (idx % NB) * 4
        for blk in range(2):
            acc = v(vAcc + (nt*2+blk)*4, 4)
            A(f"v_mfma_f32_16x16x32_bf16 {acc}, {v(buf,4)}, {v(vOF+(st*2+blk)*4,4)}, {acc}")
        if idx + NB - 1 < len(seq): rd(idx + NB - 1)
        if idx & 1:
            while bg:
                it = bg.pop(0); emit([it])
                if it[0] == "d": break
    assert not bg
    A("s_nop 7")
    ST(14)
    DS(3)
    if opt.get("tag2", True):
        vG = vOF
        for di in range(36):
            nt, blk, p = di >> 2, (di >> 1) & 1, di & 1
            b = vAcc + (nt*2+blk)*4 + 2*p
            A(f"v_cvt_pk_bf16_f32 {v(vG + (di//3)*4 + di%3)}, {v(b)}, {v(b+1)}")
            if di % 3 == 2:
                g = di // 3
                A(f"v_mov_b32 {v(vG + g*4 + 3)}, {s(sNonce)}")
                A(f"s_mov_b32 {s(sT0)}, {g*1024}")
                A(f"buffer_store_dwordx4 {v(vG+g*4,4)}, {v(vOl)}, {s(sP,4)}, {s(sT0)} offen sc1")
        ST(15)
        def fetch_and_reduce(nslot, tag):
            SETS = (32, 168)
            n = 8 * nslot
            def issue(base):
                for i in range(nslot):
                    for jj in range(8):
                        A(f"s_add_u32 {s(sT0)}, {s(sGI+i)}, {jj*32*TILE}")
                        A(f"buffer_load_dwordx4 {v(base+(i*8+jj)*4,4)}, {v(vOl)}, {s(sR,4)}, {s(sT0)} offen sc1")
            def check(base, ok):
                A(f"v_mov_b32 {T0}, 0")
                for i in range(nslot):
                    for jj in range(0, 8, 2):
                        r0, r1 = base+(i*8+jj)*4+3, base+(i*8+jj+1)*4+3
                        A(f"v_xor_b32 {T1}, {s(sNonce)}, {v(r0)}\nv_xor_b32 {T2}, {s(sNonce)}, {v(r1)}\nv_or3_b32 {T0}, {T0}, {T1}, {T2}")
                A(f"v_cmp_ne_u32 vcc, 0, {T0}")
                A(f"s_cbranch_vccz {ok}")
            def reduce(base):
                acc = 100
                for i in range(nslot):
                    for k in range(3):
                        lo, hi = acc, acc + 1
                        r = base + (i*8)*4 + k
                        A(f"v_lshlrev_b32 {v(lo)}, 16, {v(r)}\nv_and_b32 {v(hi)}, 0xffff0000, {v(r)}")
                        for jj in range(1, 8):
                            r = base + (i*8+jj)*4 + k
                            A(f"v_lshlrev_b32 {v(acc+2)}, 16, {v(r)}\nv_and_b32 {v(acc+3)}, 0xffff0000, {v(r)}")
                            A(f"v_add_f32 {v(lo)}, {v(lo)}, {v(acc+2)}\nv_add_f32 {v(hi)}, {v(hi)}, {v(acc+3)}")
                        A(f"v_cvt_pk_bf16_f32 {v(acc+4+i*3+k)}, {v(lo)}, {v(hi)}")
                        A(f"buffer_store_dword {v(acc+4+i*3+k)}, {v(vOa)}, {s(sW,4)}, {s(sOo+3*i+k)} offen")
            A(f"v_and_b32 {T3}, 7, {L}\ns_mov_b32 {s(sT0)}, {32*TILE}\nv_mul_lo_u32 {T3}, {T3}, {s(sT0)}")
            A(f"s_add_u32 {s(sT1)}, {s(sGI + nslot - 1)}, 12")
            A(f"s_mov_b32 {s(sT2)}, {SPIN}")
            A(f"buffer_load_dword {v(96)}, {T3}, {s(sR,4)}, {s(sT1)} offen sc1")
            A(f"L_{tag}_poll:")
            A(f"buffer_load_dword {v(97)}, {T3}, {s(sR,4)}, {s(sT1)} offen sc1")
            A("s_waitcnt vmcnt(1)")
            A(f"v_cmp_ne_u32 vcc, {s(sNonce)}, {v(96)}")
            A(f"s_cbranch_vccz L_{tag}_seen")
            A(f"buffer_load_dword {v(96)}, {T3}, {s(sR,4)}, {s(sT1)} offen sc1")
            A("s_waitcnt vmcnt(1)")
            A(f"v_cmp_ne_u32 vcc, {s(sNonce)}, {v(97)}")
            A(f"s_cbranch_vccz L_{tag}_seen")
            A(f"s_sub_u32 {s(sT2)}, {s(sT2)}, 1\ns_cmp_lg_u32 {s(sT2)}, 0\ns_cbranch_scc1 L_{tag}_poll")
            A(f"L_{tag}_seen:")
            A(f"s_mov_b32 {s(sT2)}, {SPIN}")
            A(f"L_{tag}_retry:")
            issue(SETS[0])
            A("s_waitcnt vmcnt(0)")
            check(SETS[0], f"L_{tag}_ok")
            A(f"s_sub_u32 {s(sT2)}, {s(sT2)}, 1\ns_cmp_lg_u32 {s(sT2)}, 0\ns_cbranch_scc1 L_{tag}_retry")
            A(f"L_{tag}_ok:")
            ST(16)
            reduce(SETS[0])
        A(f"s_cmp_lt_u32 {s(sWv)}, 2\ns_cbranch_scc1 L_red2")
        fetch_and_reduce(1, "r1")
        A("s_branch L_red_done")
        A("L_red2:")
        fetch_and_reduce(2, "r2")
        A("L_red_done:")
        return
    for nt in range(9):
        b = vAcc + nt*8
        for blk in range(2):
            A(f"v_cvt_pk_bf16_f32 {v(vOF+nt*4+blk*2)}, {v(b+blk*4)}, {v(b+blk*4+1)}")
            A(f"v_cvt_pk_bf16_f32 {v(vOF+nt*4+blk*2+1)}, {v(b+blk*4+2)}, {v(b+blk*4+3)}")
        A(f"s_mov_b32 {s(sT0)}, {nt*1024}")
        A(f"buffer_store_dwordx4 {v(vOF+nt*4,4)}, {v(vOl)}, {s(sP,4)}, {s(sT0)} offen sc1")
    A(f"s_lshl_b32 {s(sT0)}, {s(sType)}, 2\ns_add_u32 {s(sT0)}, {s(sT0)}, {s(sMT)}\ns_lshl_b32 {s(sT0)}, {s(sT0)}, 2\ns_add_u32 {s(sT0)}, {s(sT0)}, {s(sN4)}")
    A(f"s_mul_i32 {s(sT0)}, {s(sT0)}, 36864\ns_add_u32 {s(sT0)}, {s(sT0)}, {PART}")
    A(f"s_add_u32 {s(sO)}, s20, {s(sT0)}\ns_addc_u32 {s(sO+1)}, s21, 0\ns_and_b32 {s(sO+1)}, {s(sO+1)}, 0xffff")
    A(f"s_mov_b32 {s(sO+2)}, {7*1179648 + 36864}\ns_mov_b32 {s(sO+3)}, 0x20000")
    A(f"s_mov_b32 {s(sW)}, s8\ns_and_b32 {s(sW+1)}, s9, 0xffff\ns_mov_b32 {s(sW+2)}, 1179648\ns_mov_b32 {s(sW+3)}, 0x20000")
    A(f"s_mul_i32 s42, {s(sMT)}, {128*2304}\ns_mul_i32 {s(sT1)}, {s(sType)}, 1152\ns_add_u32 s42, s42, {s(sT1)}\ns_mul_i32 {s(sT1)}, {s(sN4)}, 288\ns_add_u32 s42, s42, {s(sT1)}")
    vSl, vOa = 24, 28
    for i in range(3):
        A(f"s_mul_i32 {s(sT0)}, {s(sJ)}, 576\ns_lshl_b32 {s(sT1)}, {s(sWv)}, 6\ns_add_u32 {s(sT0)}, {s(sT0)}, {s(sT1)}")
        if i < 2: A(f"s_add_u32 {s(sT0)}, {s(sT0)}, {i*256}")
        else: A(f"s_mul_i32 {s(sT0)}, {s(sJ)}, 576\ns_add_u32 {s(sT0)}, {s(sT0)}, 512")
        A(f"v_add_u32 {T0}, {s(sT0)}, {L}")
        A(f"v_lshlrev_b32 {v(vSl+i)}, 3, {T0}")
        A(f"v_lshrrev_b32 {T1}, 7, {T0}")
        A(f"v_mul_u32_u24 {T2}, 7282, {T1}\nv_lshrrev_b32 {T2}, 16, {T2}")
        A(f"v_mul_u32_u24 {T3}, 9, {T2}\nv_sub_u32 {T1}, {T1}, {T3}")
        A(f"v_lshlrev_b32 {T1}, 5, {T1}")
        A(f"v_lshlrev_b32 {T2}, 5, {T2}")
        A(f"v_and_b32 {T3}, 1, {T0}\nv_lshlrev_b32 {T3}, 4, {T3}\nv_add_u32 {T2}, {T2}, {T3}")
        A(f"v_bfe_u32 {T3}, {T0}, 1, 4\nv_add_u32 {T2}, {T2}, {T3}")
        A(f"v_mul_u32_u24 {T2}, 2304, {T2}\nv_add_u32 {T1}, {T1}, {T2}")
        A(f"v_bfe_u32 {T3}, {T0}, 5, 2\nv_lshlrev_b32 {T3}, 3, {T3}\nv_add_u32 {v(vOa+i)}, {T1}, {T3}")
    A("s_waitcnt vmcnt(0)")
    ST(15)
    def f2():
        A(f"s_lshl_b32 {s(sT0)}, {s(sType)}, 2\ns_add_u32 {s(sT0)}, {s(sT0)}, {s(sMT)}\ns_lshl_b32 {s(sT0)}, {s(sT0)}, 2\ns_add_u32 {s(sT0)}, {s(sT0)}, {s(sN4)}")
        A(f"s_lshl_b32 {s(sT0)}, {s(sT0)}, 7\ns_add_u32 {s(sT0)}, {s(sT0)}, {FLAG2}\ns_mov_b32 {s(sT1)}, {s(sJ)}")
    publish("h2", f2)
    def m2(): A(f"v_and_b32 {T2}, 7, {L}")
    await_flags("h2", m2)
    ST(16)
    DS(4)
    def group(i):
        base = 32 + i*16
        for jj in range(8):
            A(f"s_mov_b32 {s(sT0)}, {jj*1179648}")
            A(f"buffer_load_dwordx2 {v(base+2*jj,2)}, {v(vSl+i)}, {s(sO,4)}, {s(sT0)} offen sc1")
    def reduce(i, later):
        base = 32 + i*16; acc = 84
        for r in range(4): A(f"v_mov_b32 {v(acc+r)}, 0")
        for jj in range(8):
            A(f"s_waitcnt vmcnt({later + 7 - jj})")
            for d in range(2):
                src = base + 2*jj + d
                A(f"v_lshlrev_b32 {v(acc+4)}, 16, {v(src)}\nv_and_b32 {v(acc+5)}, 0xffff0000, {v(src)}")
                A(f"v_add_f32 {v(acc+2*d)}, {v(acc+2*d)}, {v(acc+4)}\nv_add_f32 {v(acc+2*d+1)}, {v(acc+2*d+1)}, {v(acc+5)}")
        A(f"v_cvt_pk_bf16_f32 {v(acc+6+2*i)}, {v(acc)}, {v(acc+1)}\nv_cvt_pk_bf16_f32 {v(acc+7+2*i)}, {v(acc+2)}, {v(acc+3)}")
    A(f"s_cmp_eq_u32 {s(sWv)}, 0\ns_cbranch_scc1 L_red3")
    group(0); group(1)
    reduce(0, 8); reduce(1, 0)
    for i in range(2): A(f"buffer_store_dwordx2 {v(90+2*i,2)}, {v(vOa+i)}, {s(sW,4)}, s42 offen")
    A("s_branch L_red_done")
    A("L_red3:")
    group(0); group(1); group(2)
    reduce(0, 16); reduce(1, 8); reduce(2, 0)
    for i in range(3): A(f"buffer_store_dwordx2 {v(90+2*i,2)}, {v(vOa+i)}, {s(sW,4)}, s42 offen")
    A("L_red_done:")
```
